```python
import torch

def _softmax(x, axis=-1):
    return torch.softmax(x, dim=axis)
def _gelu(x):
    return torch.nn.functional.gelu(x, approximate="tanh")
def _silu(x):
    return torch.nn.functional.silu(x)
def _sigmoid(x):
    return torch.sigmoid(x)
def _layernorm(x, axis=-1, eps=1e-5):
    m = x.mean(dim=axis, keepdim=True)
    v = x.var(dim=axis, keepdim=True, unbiased=False)
    return (x - m) / torch.sqrt(v + eps)
def _scatter_add(tgt, idx, src, axis=0):
    return tgt.clone().index_add_(axis, idx, src)
def _segment_sum(src, seg, n):
    out = torch.zeros((n,) + src.shape[1:], dtype=src.dtype)
    return out.index_add_(0, seg, src)
def _pad(x, pw):
    flat = tuple(v for pair in reversed(pw) for v in pair)
    return torch.nn.functional.pad(x, flat)

kernel_name = 'gated_mix__mha_block__dense_activation_silu__prompt'

def setup_inputs():

    _w = (lambda a: (lambda t: t.to(torch.bfloat16) if t.is_floating_point() else t)(torch.as_tensor(a)))
    def _A_setup():
        B, S, D, H = 1, 2048, 512, 32
        return {
            "x": _w((lambda *s: torch.randn(*s, dtype=torch.bfloat16) * 0.05)(B, S, D)),
            "wqkv": _w((lambda *s: torch.randn(*s, dtype=torch.bfloat16) * 0.8)(D, 3 * D)),
            "wo": _w((lambda *s: torch.randn(*s, dtype=torch.bfloat16) * 0.05)(D, D)),
        }
    _A_in = _A_setup()

    def _B_setup():
        B, S, D, F = 1, 2048, 512, 1376
        return {
            "x": _w((lambda *s: torch.randn(*s, dtype=torch.bfloat16) * 0.05)(B, S, D)),
            "w1": _w((lambda *s: torch.randn(*s, dtype=torch.bfloat16) * 3.2)(D, F) * (D ** -0.5)),
            "w2": _w((lambda *s: torch.randn(*s, dtype=torch.bfloat16) * 0.8)(F, D) * (F ** -0.5)),
        }
    _B_in = _B_setup()

    return {
        "A_x": _A_in["x"],
        "A_wqkv": _A_in["wqkv"],
        "A_wo": _A_in["wo"],
        "B_x": _B_in["x"],
        "B_w1": _B_in["w1"],
        "B_w2": _B_in["w2"],
        "gate_w": _w((lambda *s: torch.randn(*s, dtype=torch.bfloat16) * 0.05)(512) * 16.0),
    }

def reference(A_x, A_wqkv, A_wo, B_x, B_w1, B_w2, gate_w):
    def _A_ref(x, wqkv, wo):
        B, S, D = x.shape
        H = 32
        Dh = D // H
        qkv = (lambda x, *d: x.permute(*d))((x @ wqkv).reshape(B, S, 3, H, Dh), 2, 0, 3, 1, 4)
        q, k, v = qkv[0], qkv[1], qkv[2]
        scores = torch.einsum("bhqd,bhkd->bhqk", q, k) * (Dh ** -0.5)
        p = _softmax(scores, axis=-1)
        o = torch.einsum("bhqk,bhkd->bhqd", p, v)
        return (lambda x, *d: x.permute(*d))(o, 0, 2, 1, 3).reshape(B, S, D) @ wo

    def _B_ref(x, w1, w2):
        h = torch.einsum("bsd,df->bsf", x, w1)
        h = _silu(h)
        out = torch.einsum("bsf,fd->bsd", h, w2)
        return out

    x = A_x
    g = _sigmoid((x * gate_w).sum(-1, keepdims=True))
    a = _A_ref(x, A_wqkv, A_wo)
    b = _B_ref(x, B_w1, B_w2)
    return g * a + (1 - g) * b
```

```python
class Asm:
    def __init__(self):
        self.out = []
        self.vm = []
        self.lg = []

    def __call__(self, s):
        for line in s.strip("\n").split("\n"):
            line = line.strip()
            if line:
                self.out.append("    " + line)

    def label(self, name):
        self.out.append(name + ":")

    def raw(self, s):
        self.out.append(s)

    def comment(self, s):
        self.out.append("    ; " + s)

    def vmem(self, s, tag=None):
        self(s)
        self.vm.append(tag)
        assert len(self.vm) <= 63, "too many outstanding vmem ops"

    def _count_after(self, q, tags):
        if not isinstance(tags, (list, set)):
            tags = [tags]
        last = -1
        for i, t in enumerate(q):
            if t in tags:
                last = i
        if last < 0:
            return None
        return len(q) - 1 - last

    def wait_vm(self, tags, lgkm=None):
        n = self._count_after(self.vm, tags)
        parts = []
        if n is not None:
            parts.append(f"vmcnt({n})")
            self.vm = self.vm[len(self.vm) - n:] if n else []
        if lgkm is not None:
            m = self._count_after(self.lg, lgkm)
            if m is not None:
                parts.append(f"lgkmcnt({m})")
                self.lg = self.lg[len(self.lg) - m:] if m else []
        if parts:
            self("s_waitcnt " + " ".join(parts))

    def wait_vm_all(self):
        self("s_waitcnt vmcnt(0)")
        self.vm = []

    def ds(self, s, tag=None):
        self(s)
        self.lg.append(tag)
        assert len(self.lg) <= 15, "too many outstanding lds ops"

    def wait_lg(self, tags):
        m = self._count_after(self.lg, tags)
        if m is not None:
            self(f"s_waitcnt lgkmcnt({m})")
            self.lg = self.lg[len(self.lg) - m:] if m else []

    def wait_lg_all(self):
        self("s_waitcnt lgkmcnt(0)")
        self.lg = []

    def text(self):
        return "\n".join(self.out) + "\n"


def vr(base, n=1):
    return f"v{base}" if n == 1 else f"v[{base}:{base+n-1}]"

def sr(base, n=1):
    return f"s{base}" if n == 1 else f"s[{base}:{base+n-1}]"
```

```python
import sys
from kasm import Asm, vr, sr

NAME = "gated_mix__mha_block__dense_activation_silu__prompt"
KNAME = NAME + "_kernel"

EPOCH = 0x0
FA = 0x1000
FH = 0x4000
FO = 0x6000
GB = 0x8000
KF = 0x100000
VF = 0x300000
OF = 0x500000
HF = 0x700000
PROF = 0xC80000
WS_SIZE = 0xD00000
OOB = 0x40000000

WSLOT = 24576
XBASE = 98304
RSLOT = 8192
EXCH = 17 * RSLOT
QEX = 155648
LDS_BYTES = 163840

QSCALE = 0.25 * 1.4426950408889634
SPIN_MAX = 400000

S_X, S_WQKV, S_W1, S_W2, S_WO, S_OUT, S_WS, S_GATE, S_K, S_V = 4, 8, 12, 16, 20, 24, 28, 32, 36, 40
sK, sJ, sW, sNONCE = 44, 45, 46, 47
sT0, sT1, sT2, sT3 = 48, 49, 50, 51
sMASK = 52
sXB, sWB = 54, 55
sHD, sB = 56, 57
sI, sT = 58, 59
sOFFA, sOFFB = 60, 61
sJP, sNB = 62, 63
sARG = 64
sC0, sC1, sC2, sC3 = 84, 85, 86, 87
sOFFK = 3
sST = 88

vLANE, vL16 = 1, 2
vA, vB, vC = 3, 4, 5
vKV = 6
vG = 7
Q, S, P, O, K, V, H = 8, 16, 48, 56, 88, 104, 136
ACC = 16
XF = 40
WF = 56
QF = 80
TMP = 84
vDX = 224
vDW = 225
vD1 = 228
vX0, vX1 = 231, 232
vWA, vWA2 = 233, 234
vWB = 235
vD2 = 241
vF0, vF1, vO0, vO1 = 242, 243, 244, 245
vE0, vE1 = 246, 247
vPF = 250
vFL = 251
vL4 = 252
NVGPR = 256


def fbits(x):
    import struct
    return "0x%08x" % struct.unpack("<I", struct.pack("<f", x))[0]


class Gen:
    def __init__(self, stop=None, prof=False):
        self.e = Asm()
        self.stop = stop
        self.prof = prof
        self.nst = 0

    def stamp(self):
        if not self.prof:
            return
        e = self.e
        assert self.nst < 12
        e(f"s_memtime s[100:101]")
        e.wait_lg_all()
        e(f"s_mov_b32 {sr(sST + self.nst)}, s100")
        self.nst += 1

    def srd(self, base, argoff, size):
        e = self.e
        e(f"s_mov_b32 {sr(base)}, {sr(sARG + argoff)}")
        e(f"s_mov_b32 {sr(base+1)}, {sr(sARG + argoff + 1)}")
        e(f"s_mov_b32 {sr(base+2)}, {size}")
        e(f"s_mov_b32 {sr(base+3)}, 0x20000")

    def prologue(self):
        e = self.e
        e(f"s_load_dwordx16 s[64:79], s[0:1], 0")
        e(f"s_load_dwordx4 s[80:83], s[0:1], 64")
        e("s_cmp_ge_u32 s2, 256")
        e("s_cbranch_scc1 L_end")
        e(f"v_lshrrev_b32 {vr(vA)}, 6, v0")
        e(f"v_and_b32 {vr(vLANE)}, 63, v0")
        e(f"v_readfirstlane_b32 {sr(sW)}, {vr(vA)}")
        e(f"s_and_b32 {sr(sK)}, s2, 7")
        e(f"s_lshr_b32 {sr(sJ)}, s2, 3")
        e(f"v_lshlrev_b32 {vr(vL16)}, 4, {vr(vLANE)}")
        e(f"v_lshrrev_b32 {vr(vA)}, 4, {vr(vLANE)}")
        e(f"s_and_b32 {sr(sB)}, {sr(sW)}, 1")
        e(f"s_lshr_b32 {sr(sHD)}, {sr(sW)}, 1")
        e(f"s_lshl_b32 {sr(sT0)}, {sr(sB)}, 2")
        e(f"v_or_b32 {vr(vA)}, {sr(sT0)}, {vr(vA)}")
        e(f"v_and_b32 {vr(vB)}, 7, {vr(vLANE)}")
        e(f"v_xor_b32 {vr(vA)}, {vr(vA)}, {vr(vB)}")
        e(f"v_lshlrev_b32 {vr(vA)}, 4, {vr(vA)}")
        e(f"v_lshrrev_b32 {vr(vB)}, 3, {vr(vLANE)}")
        e(f"v_lshl_add_u32 {vr(vA)}, {vr(vB)}, 10, {vr(vA)}")
        e(f"s_lshl_b32 {sr(sT0)}, {sr(sJ)}, 16")
        e(f"s_lshl_b32 {sr(sT1)}, {sr(sW)}, 13")
        e(f"s_add_u32 {sr(sT0)}, {sr(sT0)}, {sr(sT1)}")
        e(f"v_add_u32 {vr(vDX)}, {sr(sT0)}, {vr(vA)}")
        e(f"s_lshl_b32 {sr(sXB)}, {sr(sW)}, 10")
        e(f"s_add_u32 {sr(sXB)}, {sr(sXB)}, {XBASE}")
        e(f"s_mul_i32 {sr(sWB)}, {sr(sW)}, 3072")
        e(f"s_lshl_b32 {sr(sT2)}, {sr(sB)}, 2")
        e(f"s_mul_i32 {sr(sT0)}, {sr(sW)}, {8*3072}")
        e(f"s_lshl_b32 {sr(sT1)}, {sr(sK)}, 7")
        e(f"s_add_u32 {sr(sT0)}, {sr(sT0)}, {sr(sT1)}")
        for i in range(3):
            r, c = vD1 + i, TMP + i
            e(f"v_add_u32 {vr(vA)}, {64*i}, {vr(vLANE)}")
            e(f"v_mul_u32_u24 {vr(r)}, 2731, {vr(vA)}")
            e(f"v_lshrrev_b32 {vr(r)}, 16, {vr(r)}")
            e(f"v_mul_u32_u24 {vr(vB)}, 24, {vr(r)}")
            e(f"v_sub_u32 {vr(vA)}, {vr(vA)}, {vr(vB)}")
            e(f"v_and_b32 {vr(vB)}, 2, {vr(r)}")
            e(f"v_or_b32 {vr(vB)}, {sr(sT2)}, {vr(vB)}")
            e(f"v_xor_b32 {vr(c)}, {vr(vA)}, {vr(vB)}")
            e(f"v_lshrrev_b32 {vr(vA)}, 3, {vr(c)}")
            e(f"v_lshlrev_b32 {vr(vA)}, 10, {vr(vA)}")
            e(f"v_and_b32 {vr(vB)}, 7, {vr(c)}")
            e(f"v_lshl_add_u32 {vr(vA)}, {vr(vB)}, 4, {vr(vA)}")
            e(f"v_mul_u32_u24 {vr(vB)}, 3072, {vr(r)}")
            e(f"v_add3_u32 {vr(vDW+i)}, {vr(vA)}, {vr(vB)}, {sr(sT0)}")
        e("s_waitcnt lgkmcnt(0)")
        self.srd(S_X, 0, 2048*512*2)
        self.srd(S_WQKV, 2, 512*1536*2)
        for c in range(4):
            self.dma_x(c)
            self.dma_w(c)
        for c in range(4, 8):
            self.dma_x(c)
        e(f"s_load_dword {sr(sNONCE)}, s[82:83], {EPOCH}")
        self.srd(S_W1, 8, 512*1376*2)
        self.srd(S_W2, 10, 1376*512*2)
        self.srd(S_WO, 4, 512*512*2)
        self.srd(S_OUT, 14, 2048*512*2)
        self.srd(S_GATE, 12, 1024)
        self.srd(S_WS, 18, WS_SIZE)
        e(f"s_cmp_lg_u32 {sr(sW)}, 7")
        e("s_cbranch_scc1 L_nopf")
        e("s_getpc_b64 s[84:85]")
        e.label("L_pc")
        e(f"v_lshlrev_b32 {vr(vA)}, 7, {vr(vLANE)}")
        self.pf_marker = len(e.out)
        e("; PREFETCH")
        e.label("L_nopf")
        e(f"s_mul_i32 {sr(sT0)}, {sr(sK)}, 11")
        e(f"s_min_u32 {sr(sOFFA)}, {sr(sT0)}, 76")
        e(f"s_cmp_lt_u32 {sr(sK)}, 6")
        e(f"s_cselect_b32 {sr(sOFFB)}, 11, 10")
        e(f"s_mul_i32 {sr(sT0)}, {sr(sW)}, {8*2752}")
        e(f"s_lshl_b32 {sr(sT1)}, {sr(sOFFA)}, 5")
        e(f"s_add_u32 {sr(sT0)}, {sr(sT0)}, {sr(sT1)}")
        e(f"s_lshl_b32 {sr(sT1)}, {sr(sOFFB)}, 1")
        for i in range(3):
            r, c = vD1 + i, TMP + i
            e(f"v_mul_u32_u24 {vr(r)}, 2752, {vr(r)}")
            e(f"v_lshl_add_u32 {vr(r)}, {vr(c)}, 4, {vr(r)}")
            e(f"v_add_u32 {vr(r)}, {sr(sT0)}, {vr(r)}")
            e(f"v_cmp_gt_u32 vcc, {sr(sT1)}, {vr(c)}")
            e(f"v_mov_b32 {vr(vA)}, {OOB}")
            e("s_nop 0")
            e(f"v_cndmask_b32 {vr(r)}, {vr(vA)}, {vr(r)}, vcc")
        e(f"v_and_b32 {vr(vA)}, 15, {vr(vLANE)}")
        e(f"v_lshrrev_b32 {vr(vB)}, 4, {vr(vLANE)}")
        e(f"v_lshrrev_b32 {vr(vC)}, 1, {vr(vA)}")
        e(f"v_xor_b32 {vr(vC)}, {vr(vC)}, {vr(vB)}")
        e(f"v_lshlrev_b32 {vr(vC)}, 4, {vr(vC)}")
        e(f"v_lshl_add_u32 {vr(vC)}, {vr(vA)}, 7, {vr(vC)}")
        e(f"s_lshl_b32 {sr(sT0)}, {sr(sB)}, 12")
        e(f"s_add_u32 {sr(sT0)}, {sr(sT0)}, {XBASE}")
        e(f"v_add_u32 {vr(vX0)}, {sr(sT0)}, {vr(vC)}")
        e(f"v_xor_b32 {vr(vX1)}, 64, {vr(vX0)}")
        e(f"v_lshrrev_b32 {vr(vC)}, 2, {vr(vA)}")
        e(f"v_lshl_add_u32 {vr(vC)}, {vr(vB)}, 3, {vr(vC)}")
        e(f"v_mul_u32_u24 {vr(vC)}, 384, {vr(vC)}")
        e(f"v_and_b32 {vr(TMP)}, 3, {vr(vA)}")
        e(f"v_lshl_add_u32 {vr(vC)}, {vr(TMP)}, 3, {vr(vC)}")
        e(f"v_lshrrev_b32 {vr(TMP)}, 3, {vr(vA)}")
        e(f"v_and_b32 {vr(TMP+1)}, 1, {vr(vB)}")
        e(f"v_lshl_add_u32 {vr(TMP)}, {vr(TMP+1)}, 1, {vr(TMP)}")
        e(f"v_xor_b32 {vr(TMP+1)}, {sr(sHD)}, {vr(TMP)}")
        e(f"v_lshl_add_u32 {vr(vWA)}, {vr(TMP+1)}, 5, {vr(vC)}")
        e(f"v_add_u32 {vr(vWA2)}, {2*WSLOT}, {vr(vWA)}")
        e(f"s_mul_i32 {sr(sT0)}, {sr(sHD)}, 3")
        for i in range(3):
            e(f"s_add_u32 {sr(sT1)}, {sr(sT0)}, {i}")
            e(f"v_xor_b32 {vr(TMP+1)}, {sr(sT1)}, {vr(TMP)}")
            e(f"v_lshl_add_u32 {vr(vWB+2*i)}, {vr(TMP+1)}, 5, {vr(vC)}")
            e(f"v_add_u32 {vr(vWB+2*i+1)}, {2*WSLOT}, {vr(vWB+2*i)}")
        e(f"v_lshrrev_b32 {vr(vC)}, 5, {vr(vLANE)}")
        e(f"v_lshlrev_b32 {vr(vC)}, 8, {vr(vC)}")
        e(f"v_lshl_add_u32 {vr(vKV)}, {vr(vA)}, 4, {vr(vC)}")
        e(f"s_mov_b32 {sr(sMASK)}, 0xffff")
        e(f"s_mov_b32 {sr(sMASK+1)}, 0xffff")
        for i in range(32):
            e(f"v_mov_b32 {vr(V+i)}, 0x3f803f80")
        e(f"s_and_b32 {sr(sT0)}, {sr(sJ)}, 3")
        e(f"s_lshl_b32 {sr(sJP)}, {sr(sK)}, 2")
        e(f"s_add_u32 {sr(sJP)}, {sr(sJP)}, {sr(sT0)}")
        e(f"s_lshr_b32 {sr(sNB)}, {sr(sJ)}, 2")
        e(f"v_lshrrev_b32 {vr(vC)}, 4, {vr(vLANE)}")
        e(f"v_and_b32 {vr(vC)}, 1, {vr(vC)}")
        e(f"v_lshlrev_b32 {vr(vC)}, 2, {vr(vC)}")
        e(f"v_and_b32 {vr(TMP)}, 7, {vr(vLANE)}")
        e(f"v_xor_b32 {vr(vC)}, {vr(vC)}, {vr(TMP)}")
        e(f"v_lshlrev_b32 {vr(vC)}, 4, {vr(vC)}")
        e(f"v_lshrrev_b32 {vr(TMP)}, 3, {vr(vLANE)}")
        e(f"v_lshl_add_u32 {vr(vC)}, {vr(TMP)}, 10, {vr(vC)}")
        e(f"s_lshl_b32 {sr(sT0)}, {sr(sW)}, 13")
        e(f"s_lshl_b32 {sr(sT1)}, {sr(sNB)}, 7")
        e(f"s_add_u32 {sr(sT0)}, {sr(sT0)}, {sr(sT1)}")
        e(f"v_add_u32 {vr(vD2)}, {sr(sT0)}, {vr(vC)}")
        e(f"v_lshrrev_b32 {vr(vC)}, 2, {vr(vA)}")
        e(f"v_lshlrev_b32 {vr(vC)}, 7, {vr(vC)}")
        e(f"v_and_b32 {vr(TMP)}, 1, {vr(vB)}")
        e(f"v_lshl_add_u32 {vr(vC)}, {vr(TMP)}, 5, {vr(vC)}")
        e(f"v_and_b32 {vr(TMP)}, 3, {vr(vA)}")
        e(f"v_lshl_add_u32 {vr(vC)}, {vr(TMP)}, 3, {vr(vC)}")
        e(f"v_lshrrev_b32 {vr(TMP)}, 3, {vr(vA)}")
        e(f"v_lshl_add_u32 {vr(vC)}, {vr(TMP)}, 6, {vr(vC)}")
        e(f"s_lshl_b32 {sr(sT0)}, {sr(sHD)}, 11")
        e(f"v_add_u32 {vr(vC)}, {sr(sT0)}, {vr(vC)}")
        e(f"v_lshrrev_b32 {vr(TMP)}, 5, {vr(vLANE)}")
        e(f"v_lshl_add_u32 {vr(vF0)}, {vr(TMP)}, 10, {vr(vC)}")
        e(f"v_xor_b32 {vr(vF1)}, 64, {vr(vF0)}")
        e(f"v_lshl_add_u32 {vr(vO0)}, {vr(TMP)}, 9, {vr(vC)}")
        e(f"v_xor_b32 {vr(vO1)}, 64, {vr(vO0)}")
        e("s_waitcnt lgkmcnt(0)")
        e(f"s_add_u32 {sr(sNONCE)}, {sr(sNONCE)}, 1")

    def dma_x(self, c):
        e = self.e
        e(f"s_add_u32 m0, {sr(sXB)}, {c*8192}")
        e(f"s_movk_i32 {sr(sT3)}, {c*128}")
        e.vmem(f"buffer_load_dwordx4 {vr(vDX)}, {sr(S_X,4)}, {sr(sT3)} offen lds", ("x", c))

    def dma_w(self, c):
        e = self.e
        slot = c % 4
        for i in range(3):
            e(f"s_add_u32 m0, {sr(sWB)}, {slot*WSLOT + i*1024}")
            if i == 0:
                e(f"s_mov_b32 {sr(sT3)}, {(c*64*3072) if c < 8 else ((c-8)*64*2752)}")
            else:
                e("s_nop 0")
            if c < 8:
                e.vmem(f"buffer_load_dwordx4 {vr(vDW+i)}, {sr(S_WQKV,4)}, {sr(sT3)} offen lds", ("w", c))
            else:
                e.vmem(f"buffer_load_dwordx4 {vr(vD1+i)}, {sr(S_W1,4)}, {sr(sT3)} offen lds", ("w", c))

    def p1_iter(self, c):
        e = self.e
        slot, kc = c % 4, c % 8
        tags = [("w", c)] + ([("x", c)] if c < 8 else [])
        e.wait_vm(tags)
        e("s_barrier")

        def rd_x(ks, T):
            e.ds(f"ds_read_b128 {vr(XF+8*ks+4*T,4)}, {vr(vX1 if ks else vX0)} offset:{kc*8192 + T*2048}", ("x", ks))
        def rd_w(ks, g, u):
            if c < 8:
                base = vWA2 if slot >= 2 else vWA
                off = (slot % 2)*WSLOT + ks*12288 + u*1536 + g*128
            else:
                base = vWB + 2*g + (1 if slot >= 2 else 0)
                off = (slot % 2)*WSLOT + ks*12288 + u*1536
            e.ds(f"ds_read_b64_tr_b16 {vr(WF+12*ks+4*g+2*u,2)}, {vr(base)} offset:{off}", ("w", ks, g))
        def mm(ks, g, T):
            acc = vr(ACC + 8*g + 4*T, 4)
            cin = "0" if (kc == 0 and ks == 0) else acc
            w_, x_ = vr(WF+12*ks+4*g, 4), vr(XF+8*ks+4*T, 4)
            a, b = (x_, w_) if (c < 8 and g == 2) else (w_, x_)
            e(f"v_mfma_f32_16x16x32_bf16 {acc}, {a}, {b}, {cin}")

        rd_x(0, 0); rd_x(0, 1)
        for g in range(3):
            rd_w(0, g, 0); rd_w(0, g, 1)
        if c >= 1 and c + 3 <= 15:
            self.dma_w(c + 3)
        self.p1_hook(c)
        e.wait_lg(("w", 0, 0))
        mm(0, 0, 0); mm(0, 0, 1)
        rd_x(1, 0); rd_x(1, 1); rd_w(1, 0, 0); rd_w(1, 0, 1)
        e.wait_lg(("w", 0, 1))
        mm(0, 1, 0); mm(0, 1, 1)
        rd_w(1, 1, 0); rd_w(1, 1, 1)
        e.wait_lg(("w", 0, 2))
        mm(0, 2, 0); mm(0, 2, 1)
        rd_w(1, 2, 0); rd_w(1, 2, 1)
        for g in range(3):
            e.wait_lg(("w", 1, g))
            mm(1, g, 0); mm(1, g, 1)

    def p1_hook(self, c):
        e = self.e
        if c == 11:
            e.wait_vm("kst")
            e(f"s_lshl_b32 {sr(sT0)}, {sr(sK)}, 2")
            e(f"s_add_u32 {sr(sT0)}, {sr(sT0)}, {sr(sHD)}")
            e(f"s_lshl_b32 {sr(sT0)}, {sr(sT0)}, 6")
            e(f"s_lshl_b32 {sr(sT1)}, {sr(sJ)}, 1")
            e(f"s_add_u32 {sr(sT0)}, {sr(sT0)}, {sr(sT1)}")
            e(f"s_add_u32 {sr(sT0)}, {sr(sT0)}, {sr(sB)}")
            e(f"s_lshl_b32 {sr(sT0)}, {sr(sT0)}, 2")
            e(f"s_add_u32 {sr(sT0)}, {sr(sT0)}, {FA}")
            self.flag_store(sT0)

    def flag_store(self, soff):
        e = self.e
        e(f"v_mov_b32 {vr(vA)}, {sr(sNONCE)}")
        e(f"v_mov_b32 {vr(vB)}, 0")
        e("s_mov_b64 exec, 1")
        e.vmem(f"buffer_store_dword {vr(vA)}, {vr(vB)}, {sr(S_WS,4)}, {sr(soff)} offen sc1", "flag")
        e("s_mov_b64 exec, -1")

    def set_exec(self, nlanes):
        e = self.e
        if nlanes == 64:
            e("s_mov_b64 exec, -1")
        elif nlanes == 32:
            e("s_mov_b32 exec_hi, 0")
        else:
            e(f"s_mov_b64 exec, {(1 << nlanes) - 1}")

    def poll_issue(self, name, soff, nlanes, vaddr):
        e = self.e
        if nlanes < 64:
            self.set_exec(nlanes)
        e.vmem(f"buffer_load_dword {vr(vFL)}, {vr(vaddr)}, {sr(S_WS,4)}, {sr(soff)} offen sc1", ("poll", name))
        if nlanes < 64:
            self.set_exec(64)

    def poll_check(self, name, soff, nlanes, vaddr):
        e = self.e
        e.wait_vm(("poll", name))
        if nlanes < 64:
            self.set_exec(nlanes)
        e(f"v_cmp_ne_u32 vcc, {sr(sNONCE)}, {vr(vFL)}")
        e(f"s_cbranch_vccz L_polled_{name}")
        e(f"s_mov_b32 {sr(sC0)}, 0")
        e.label(f"L_poll_{name}")
        e("s_sleep 1")
        e(f"buffer_load_dword {vr(vFL)}, {vr(vaddr)}, {sr(S_WS,4)}, {sr(soff)} offen sc1")
        e(f"s_add_u32 {sr(sC0)}, {sr(sC0)}, 1")
        e("s_waitcnt vmcnt(0)")
        e(f"v_cmp_ne_u32 vcc, {sr(sNONCE)}, {vr(vFL)}")
        e(f"s_cmp_ge_u32 {sr(sC0)}, {SPIN_MAX}")
        e(f"s_cbranch_scc1 L_polled_{name}")
        e(f"s_cbranch_vccnz L_poll_{name}")
        e.label(f"L_polled_{name}")
        if nlanes < 64:
            self.set_exec(64)

    def pack_frag(self, dst, acc, swap, scale=None):
        e = self.e
        if scale is not None:
            for i in range(8):
                e(f"v_mul_f32 {vr(acc+i)}, {scale}, {vr(acc+i)}")
        for i in range(4):
            e(f"v_cvt_pk_bf16_f32 {vr(dst+i)}, {vr(acc+2*i)}, {vr(acc+2*i+1)}")
        e("s_nop 1")
        e(f"v_permlane{swap}_swap_b32 {vr(dst)}, {vr(dst+2)}")
        e(f"v_permlane{swap}_swap_b32 {vr(dst+1)}, {vr(dst+3)}")

    def p1a_epilogue(self):
        e = self.e
        e("s_nop 7")
        e(f"s_mov_b32 {sr(sC1)}, {fbits(QSCALE)}")
        e(f"s_lshl_b32 {sr(sT0)}, {sr(sK)}, 2")
        e(f"s_add_u32 {sr(sT0)}, {sr(sT0)}, {sr(sHD)}")
        e(f"s_lshl_b32 {sr(sT0)}, {sr(sT0)}, 6")
        e(f"s_lshl_b32 {sr(sT1)}, {sr(sJ)}, 1")
        e(f"s_add_u32 {sr(sT0)}, {sr(sT0)}, {sr(sT1)}")
        e(f"s_add_u32 {sr(sT0)}, {sr(sT0)}, {sr(sB)}")
        e(f"s_lshl_b32 {sr(sT0)}, {sr(sT0)}, 10")
        e(f"s_add_u32 {sr(sT1)}, {sr(sT0)}, {VF}")
        e(f"s_add_u32 {sr(sT0)}, {sr(sT0)}, {KF}")
        self.pack_frag(XF, ACC + 8, 16)
        self.pack_frag(XF + 4, ACC + 16, 32)
        e("s_nop 0")
        e.vmem(f"buffer_store_dwordx4 {vr(XF,4)}, {vr(vL16)}, {sr(S_WS,4)}, {sr(sT0)} offen sc1", "kst")
        e.vmem(f"buffer_store_dwordx4 {vr(XF+4,4)}, {vr(vL16)}, {sr(S_WS,4)}, {sr(sT1)} offen sc1", "kst")
        self.pack_frag(QF, ACC, 16, scale=sr(sC1))

    def gate(self):
        e = self.e
        e(f"s_lshl_b32 {sr(sT0)}, {sr(sK)}, 3")
        e(f"s_add_u32 {sr(sT0)}, {sr(sT0)}, {sr(sW)}")
        e(f"s_lshr_b32 {sr(sT1)}, {sr(sT0)}, 1")
        e(f"s_and_b32 {sr(sT1)}, {sr(sT1)}, 7")
        e(f"s_lshl_b32 {sr(sT2)}, {sr(sT0)}, 7")
        e(f"s_add_u32 {sr(sT2)}, {sr(sT2)}, {XBASE}")
        e(f"v_and_b32 {vr(vA)}, 7, {vr(vLANE)}")
        e(f"v_xor_b32 {vr(vA)}, {sr(sT1)}, {vr(vA)}")
        e(f"v_lshlrev_b32 {vr(vA)}, 4, {vr(vA)}")
        e(f"v_lshrrev_b32 {vr(vB)}, 3, {vr(vLANE)}")
        e(f"v_lshl_add_u32 {vr(vA)}, {vr(vB)}, 13, {vr(vA)}")
        e(f"v_add_u32 {vr(vA)}, {sr(sT2)}, {vr(vA)}")
        e.ds(f"ds_read_b128 {vr(XF,4)}, {vr(vA)}", "gx")
        e.wait_vm("gw", lgkm="gx")
        acc = XF + 8
        e(f"v_mov_b32 {vr(acc)}, 0")
        for i in range(4):
            x, w_ = XF + i, TMP + i
            e(f"v_lshlrev_b32 {vr(vA)}, 16, {vr(x)}")
            e(f"v_lshlrev_b32 {vr(vB)}, 16, {vr(w_)}")
            e(f"v_and_b32 {vr(x)}, 0xffff0000, {vr(x)}")
            e(f"v_and_b32 {vr(w_)}, 0xffff0000, {vr(w_)}")
            e(f"v_mul_f32 {vr(vA)}, {vr(vA)}, {vr(vB)}")
            e(f"v_mul_f32 {vr(vB)}, {vr(x)}, {vr(w_)}")
            e(f"v_cvt_pk_bf16_f32 {vr(vA)}, {vr(vA)}, {vr(vB)}")
            e(f"v_lshlrev_b32 {vr(vB)}, 16, {vr(vA)}")
            e(f"v_and_b32 {vr(vA)}, 0xffff0000, {vr(vA)}")
            e(f"v_add_f32 {vr(acc)}, {vr(acc)}, {vr(vB)}")
            e(f"v_add_f32 {vr(acc)}, {vr(acc)}, {vr(vA)}")
        e("s_nop 1")
        for ctl in ("row_shr:1", "row_shr:2", "row_shr:4", "row_shr:8", "row_bcast:15 row_mask:0xa", "row_bcast:31 row_mask:0xc"):
            e(f"v_add_f32_dpp {vr(acc)}, {vr(acc)}, {vr(acc)} {ctl} bound_ctrl:0" if "row_shr" in ctl else
              f"v_add_f32_dpp {vr(acc)}, {vr(acc)}, {vr(acc)} {ctl}")
            e("s_nop 1")
        e(f"v_readlane_b32 {sr(sT1)}, {vr(acc)}, 63")
        e("s_nop 1")
        e(f"v_mov_b32 {vr(vA)}, {sr(sT1)}")
        e(f"v_cvt_pk_bf16_f32 {vr(vA)}, {vr(vA)}, {vr(vA)}")
        e(f"v_lshlrev_b32 {vr(vA)}, 16, {vr(vA)}")
        e(f"v_mul_f32 {vr(vA)}, {fbits(-1.4426950408889634)}, {vr(vA)}")
        e(f"v_exp_f32 {vr(vA)}, {vr(vA)}")
        e("s_nop 0")
        e(f"v_add_f32 {vr(vA)}, 1.0, {vr(vA)}")
        e(f"v_rcp_f32 {vr(vA)}, {vr(vA)}")
        e("s_nop 0")
        e(f"v_cvt_pk_bf16_f32 {vr(vA)}, {vr(vA)}, {vr(vA)}")
        e(f"v_lshlrev_b32 {vr(vA)}, 16, {vr(vA)}")
        e(f"s_lshl_b32 {sr(sT1)}, {sr(sJ)}, 6")
        e(f"s_add_u32 {sr(sT0)}, {sr(sT0)}, {sr(sT1)}")
        e(f"s_lshl_b32 {sr(sT0)}, {sr(sT0)}, 2")
        e(f"s_add_u32 {sr(sT0)}, {sr(sT0)}, {GB}")
        e(f"v_mov_b32 {vr(vB)}, 0")
        e("s_mov_b64 exec, 1")
        e.vmem(f"buffer_store_dword {vr(vA)}, {vr(vB)}, {sr(S_WS,4)}, {sr(sT0)} offen sc1", "hst")
        e("s_mov_b64 exec, -1")

    def p1b_epilogue(self):
        e = self.e
        e("s_nop 7")
        e(f"s_lshl_b32 {sr(sT0)}, {sr(sJ)}, 1")
        e(f"s_add_u32 {sr(sT0)}, {sr(sT0)}, {sr(sB)}")
        e(f"s_mul_i32 {sr(sT0)}, {sr(sT0)}, 86")
        e(f"s_add_u32 {sr(sT0)}, {sr(sT0)}, {sr(sOFFA)}")
        e(f"s_mul_i32 {sr(sT1)}, {sr(sHD)}, 3")
        e(f"s_add_u32 {sr(sT0)}, {sr(sT0)}, {sr(sT1)}")
        e(f"s_lshl_b32 {sr(sT0)}, {sr(sT0)}, 10")
        e(f"s_add_u32 {sr(sT0)}, {sr(sT0)}, {HF}")
        e(f"s_mov_b32 {sr(sC1)}, {fbits(-1.4426950408889634)}")
        for g in range(3):
            acc = ACC + 8*g
            t = XF
            for i in range(8):
                e(f"v_mul_f32 {vr(t+i)}, {sr(sC1)}, {vr(acc+i)}")
            for i in range(8):
                e(f"v_exp_f32 {vr(t+i)}, {vr(t+i)}")
            for i in range(8):
                e(f"v_add_f32 {vr(t+i)}, 1.0, {vr(t+i)}")
            for i in range(8):
                e(f"v_rcp_f32 {vr(t+i)}, {vr(t+i)}")
            for i in range(8):
                e(f"v_mul_f32 {vr(acc+i)}, {vr(acc+i)}, {vr(t+i)}")
            dst = WF + 4*g
            self.pack_frag(dst, acc, 16)
            e(f"s_add_u32 {sr(sT2)}, {sr(sT1)}, {g}")
            e(f"s_add_u32 {sr(sT3)}, {sr(sT0)}, {g*1024}")
            e(f"s_cmp_lt_u32 {sr(sT2)}, {sr(sOFFB)}")
            e(f"s_cselect_b32 {sr(sT3)}, {sr(sT3)}, {OOB}")
            e.vmem(f"buffer_store_dwordx4 {vr(dst,4)}, {vr(vL16)}, {sr(S_WS,4)}, {sr(sT3)} offen sc1", "hst")

    def publish_h(self):
        e = self.e
        e(f"s_lshl_b32 {sr(sT0)}, {sr(sJ)}, 6")
        e(f"s_lshl_b32 {sr(sT1)}, {sr(sK)}, 3")
        e(f"s_add_u32 {sr(sT0)}, {sr(sT0)}, {sr(sT1)}")
        e(f"s_add_u32 {sr(sT0)}, {sr(sT0)}, {sr(sW)}")
        e(f"s_lshl_b32 {sr(sT0)}, {sr(sT0)}, 2")
        e(f"s_add_u32 {sr(sT0)}, {sr(sT0)}, {FH}")
        self.flag_store(sT0)

    def p1(self):
        e = self.e
        for c in range(8):
            self.p1_iter(c)
        self.stamp()
        self.p1a_epilogue()
        for c in range(8, 16):
            if c == 12 and self.stop != "p1":
                self.att_setup()
            if c == 15 and self.stop != "p1":
                self.poll_issue("a", sOFFK, 32, vL4)
            if c == 13:
                e.vmem(f"buffer_load_dwordx4 {vr(TMP,4)}, {vr(vL16)}, {sr(S_GATE,4)}, 0 offen", "gw")
            self.p1_iter(c)
        self.stamp()

    def att_setup(self):
        e = self.e
        e(f"s_lshl_b32 {sr(sT0)}, {sr(sK)}, 2")
        e(f"s_add_u32 {sr(sT0)}, {sr(sT0)}, {sr(sHD)}")
        e(f"s_lshl_b32 {sr(sT1)}, {sr(sT0)}, 1")
        e(f"s_add_u32 {sr(sT1)}, {sr(sT1)}, {sr(sB)}")
        e(f"s_lshl_b32 {sr(sT2)}, {sr(sT1)}, 15")
        e(f"s_add_u32 {sr(sT2)}, {sr(sT2)}, {KF}")
        e(f"s_add_u32 {sr(S_K)}, {sr(sARG+18)}, {sr(sT2)}")
        e(f"s_addc_u32 {sr(S_K+1)}, {sr(sARG+19)}, 0")
        e(f"s_mov_b32 {sr(S_K+2)}, 0x8000")
        e(f"s_mov_b32 {sr(S_K+3)}, 0x20000")
        e(f"s_add_u32 {sr(S_V)}, {sr(S_K)}, {VF-KF}")
        e(f"s_addc_u32 {sr(S_V+1)}, {sr(S_K+1)}, 0")
        e(f"s_mov_b32 {sr(S_V+2)}, 0x8000")
        e(f"s_mov_b32 {sr(S_V+3)}, 0x20000")
        e(f"s_lshl_b32 {sr(sI)}, {sr(sJ)}, 10")
        e(f"s_lshl_b32 {sr(sT1)}, {sr(sT1)}, 7")
        e(f"s_add_u32 {sr(sT1)}, {sr(sT1)}, {FA}")
        e(f"s_mov_b32 {sr(sOFFK)}, {sr(sT1)}")
        e(f"v_lshlrev_b32 {vr(vL4)}, 2, {vr(vLANE)}")

    def att_soff(self, i):
        self.e(f"s_xor_b32 {sr(sT)}, {sr(sI)}, {i*1024}")
    def att_load_k(self, i, depth=4):
        self.e.vmem(f"buffer_load_dwordx4 {vr(K+4*(i%depth),4)}, {vr(vL16)}, {sr(S_K,4)}, {sr(sT)} offen sc1", ("kv", i))
    def att_load_v(self, i, depth=4):
        e = self.e; sl = i % depth
        e(f"s_mov_b64 exec, {sr(sMASK,2)}")
        e.vmem(f"buffer_load_dwordx4 {vr(V+8*sl,4)}, {vr(vKV)}, {sr(S_V,4)}, {sr(sT)} offen sc1", ("kv", i))
        e.vmem(f"buffer_load_dwordx4 {vr(V+8*sl+4,4)}, {vr(vKV)}, {sr(S_V,4)}, {sr(sT)} offen offset:512 sc1", ("kv", i))
        e("s_mov_b64 exec, -1")

    def att_prefetch(self, depth=4):
        for i in range(depth - 1):
            self.att_soff(i); self.att_load_k(i); self.att_load_v(i)
        self.att_soff(depth - 1)

    def dma_round(self, r):
        e = self.e
        e(f"s_add_u32 m0, {sr(sC2)}, {(r % 20)*RSLOT}")
        if r < 22:
            e(f"s_mov_b32 {sr(sC3)}, {r*65536}")
            e.vmem(f"buffer_load_dwordx4 {vr(vD2)}, {sr(S_W2,4)}, {sr(sC3)} offen lds", ("r", r))
        else:
            e(f"s_mov_b32 {sr(sC3)}, {(r-22)*65536}")
            e.vmem(f"buffer_load_dwordx4 {vr(vD2)}, {sr(S_WO,4)}, {sr(sC3)} offen lds", ("r", r))

    def load_h(self, r):
        e = self.e
        e(f"s_add_u32 {sr(sC3)}, {sr(sC1)}, {r*4096}")
        e.vmem(f"buffer_load_dwordx4 {vr(H+4*r,4)}, {vr(vL16)}, {sr(S_WS,4)}, {sr(sC3)} offen sc1", ("h", r))

    def attention(self, ntiles=32, depth=4):
        e = self.e
        def qk(u):
            t, b = divmod(u, 2)
            return f"v_mfma_f32_32x32x16_bf16 {vr(S+16*(u%2),16)}, {vr(K+4*(t%depth),4)}, {vr(Q+4*b,4)}, 0"
        def pv(u, m, first=False):
            t, b = divmod(u, 2)
            c = "0" if first else vr(O+16*b, 16)
            return f"v_mfma_f32_32x32x16_bf16 {vr(O+16*b,16)}, {vr(V+8*(t%depth)+4*m,4)}, {vr(P+4*m,4)}, {c}"
        def ex(u, i):
            r = S + 16*(u % 2) + i
            return f"v_exp_f32 {vr(r)}, {vr(r)}"
        def cv(u, i):
            r = S + 16*(u % 2) + 2*i
            return f"v_cvt_pk_bf16_f32 {vr(P+i)}, {vr(r)}, {vr(r+1)}"
        nu = 2 * ntiles
        e.wait_vm(("kv", 0))
        e(qk(0))
        e("s_nop 15")
        e("s_nop 3")
        for u in range(nu):
            t, b = divmod(u, 2)
            pre = t + depth - 1 < ntiles
            e(ex(u, 0)); e(ex(u, 1))
            if u > 0:
                e(pv(u - 1, 1))
            if b == 0 and pre:
                self.att_load_v(t + depth - 1)
            if b == 1 and t + 1 < ntiles:
                e.wait_vm(("kv", t + 1))
            for i in range(2, 6):
                e(ex(u, i))
            if u + 1 < nu:
                e(qk(u + 1))
            if b == 1 and t + depth < ntiles:
                self.att_soff(t + depth)
            if b == 0:
                self.att_hook(t, 0)
            e(ex(u, 6)); e(ex(u, 7))
            for i in range(4):
                e(cv(u, i))
            e(ex(u, 8)); e(ex(u, 9))
            e(pv(u, 0, first=(t == 0)))
            if b == 0 and pre:
                self.att_load_k(t + depth - 1)
            if b == 1:
                self.att_hook(t, 1)
            for i in range(10, 16):
                e(ex(u, i))
            for i in range(4, 8):
                e(cv(u, i))
        e("s_nop 1")
        e(pv(nu - 1, 1))

    def att_hook(self, t, pos):
        e = self.e
        if t == 3 and pos == 0:
            e.wait_vm("hst")
            self.publish_h()
        if t == 4 and pos == 0:
            e(f"s_lshl_b32 {sr(sC2)}, {sr(sW)}, 10")
        if pos == 1 and 4 <= t <= 20:
            self.dma_round(t - 4)
        if t == 6 and pos == 0:
            e(f"s_lshl_b32 {sr(sC1)}, {sr(sJP)}, 8")
            e(f"s_add_u32 {sr(sC1)}, {sr(sC1)}, {FH}")
            self.poll_issue("h", sC1, 64, vL4)
        if t == 8 and pos == 0:
            self.poll_check("h", sC1, 64, vL4)
            e(f"s_lshl_b32 {sr(sC1)}, {sr(sJP)}, 1")
            e(f"s_add_u32 {sr(sC1)}, {sr(sC1)}, {sr(sB)}")
            e(f"s_mul_i32 {sr(sC1)}, {sr(sC1)}, 86")
            e(f"s_add_u32 {sr(sC1)}, {sr(sC1)}, {sr(sHD)}")
            e(f"s_lshl_b32 {sr(sC1)}, {sr(sC1)}, 10")
            e(f"s_add_u32 {sr(sC1)}, {sr(sC1)}, {HF}")
        if pos == 0 and 9 <= t <= 30:
            self.load_h(t - 9)
        if t == 31 and pos == 0:
            e(f"s_lshl_b32 {sr(sT0)}, {sr(sJP)}, 6")
            e(f"s_lshl_b32 {sr(sT1)}, {sr(sB)}, 5")
            e(f"s_add_u32 {sr(sT0)}, {sr(sT0)}, {sr(sT1)}")
            e(f"s_lshl_b32 {sr(sT0)}, {sr(sT0)}, 2")
            e(f"s_add_u32 {sr(sT0)}, {sr(sT0)}, {GB}")
            e(f"v_and_b32 {vr(vC)}, 31, {vr(vLANE)}")
            e(f"v_lshlrev_b32 {vr(vC)}, 2, {vr(vC)}")
            e.vmem(f"buffer_load_dword {vr(vG)}, {vr(vC)}, {sr(S_WS,4)}, {sr(sT0)} offen sc1", "g")

    def att_epilogue(self):
        e = self.e
        e("s_nop 15")
        e(f"s_lshl_b32 {sr(sT0)}, {sr(sW)}, 11")
        e(f"s_lshl_b32 {sr(sT1)}, {sr(sW)}, 8")
        e(f"s_add_u32 {sr(sT0)}, {sr(sT0)}, {sr(sT1)}")
        e(f"s_add_u32 {sr(sT0)}, {sr(sT0)}, {EXCH}")
        e(f"v_lshlrev_b32 {vr(vC)}, 2, {vr(vLANE)}")
        e(f"v_add_u32 {vr(vE0)}, {sr(sT0)}, {vr(vC)}")
        e(f"s_xor_b32 {sr(sT1)}, {sr(sW)}, 1")
        e(f"s_mul_i32 {sr(sT1)}, {sr(sT1)}, 2304")
        e(f"s_add_u32 {sr(sT1)}, {sr(sT1)}, {EXCH}")
        e(f"v_add_u32 {vr(vE1)}, {sr(sT1)}, {vr(vC)}")
        e(f"s_cmp_eq_u32 {sr(sB)}, 0")
        e("s_cbranch_scc1 L_b0")
        for i in range(9):
            e(f"ds_write_b32 {vr(vE0)}, {vr(O+i)} offset:{256*i}")
        for i in range(9):
            e(f"v_mov_b32 {vr(O+i)}, {vr(O+16+i)}")
        e(f"v_mov_b32 {vr(Q)}, {vr(Q+4)}")
        e(f"v_mov_b32 {vr(Q+1)}, {vr(Q+5)}")
        e(f"v_mov_b32 {vr(Q+2)}, {vr(Q+6)}")
        e(f"v_mov_b32 {vr(Q+3)}, {vr(Q+7)}")
        e("s_branch L_bx")
        e.label("L_b0")
        for i in range(9):
            e(f"ds_write_b32 {vr(vE0)}, {vr(O+16+i)} offset:{256*i}")
        e.label("L_bx")
        e.wait_vm([("r", r) for r in range(17)] + [("h", r) for r in range(22)] + ["g"])
        e("s_waitcnt lgkmcnt(0)")
        e("s_barrier")
        for i in range(9):
            e.ds(f"ds_read_b32 {vr(S+i)}, {vr(vE1)} offset:{256*i}", "ox")
        e.wait_lg("ox")
        for i in range(9):
            e(f"v_add_f32 {vr(O+i)}, {vr(O+i)}, {vr(S+i)}")
        e(f"v_mov_b32 {vr(vA)}, {fbits(2.0**-64)}")
        e(f"v_mov_b32 {vr(vB)}, {fbits(2.0**64)}")
        e(f"v_cmp_nle_f32 vcc, {vr(vA)}, {vr(O+8)}")
        e(f"v_cmp_nle_f32 s[48:49], {vr(O+8)}, {vr(vB)}")
        e(f"s_or_b64 vcc, vcc, s[48:49]")
        e(f"s_movk_i32 {sr(sT2)}, 0x207")
        for i in range(8):
            e(f"v_cmp_class_f32 s[48:49], {vr(O+i)}, {sr(sT2)}")
            e(f"s_or_b64 vcc, vcc, s[48:49]")
        e("s_cbranch_vccz L_fast")
        self.slow_path()
        e.label("L_fast")
        e(f"v_rcp_f32 {vr(vA)}, {vr(O+8)}")
        e("s_nop 0")
        for i in range(8):
            e(f"v_mul_f32 {vr(O+i)}, {vr(O+i)}, {vr(vA)}")
        for i in range(4):
            e(f"v_cvt_pk_bf16_f32 {vr(P+i)}, {vr(O+2*i)}, {vr(O+2*i+1)}")
        e(f"s_lshl_b32 {sr(sT0)}, {sr(sJ)}, 1")
        e(f"s_add_u32 {sr(sT0)}, {sr(sT0)}, {sr(sB)}")
        e(f"s_lshl_b32 {sr(sT0)}, {sr(sT0)}, 5")
        e(f"s_lshl_b32 {sr(sT1)}, {sr(sK)}, 2")
        e(f"s_add_u32 {sr(sT0)}, {sr(sT0)}, {sr(sT1)}")
        e(f"s_add_u32 {sr(sT0)}, {sr(sT0)}, {sr(sHD)}")
        e(f"s_lshl_b32 {sr(sT0)}, {sr(sT0)}, 10")
        e(f"s_add_u32 {sr(sT0)}, {sr(sT0)}, {OF}")
        e.vmem(f"buffer_store_dwordx4 {vr(P,4)}, {vr(vL16)}, {sr(S_WS,4)}, {sr(sT0)} offen sc1", "ost")

    def slow_path(self):
        e = self.e
        e("s_waitcnt vmcnt(0)")
        saved = list(e.vm); e.vm = []
        e(f"s_lshl_b32 {sr(sT0)}, {sr(sK)}, 2")
        e(f"s_add_u32 {sr(sT0)}, {sr(sT0)}, {sr(sHD)}")
        e(f"s_lshl_b32 {sr(sT0)}, {sr(sT0)}, 16")
        e(f"s_add_u32 {sr(sT0)}, {sr(sT0)}, {KF}")
        e(f"v_mov_b32 {vr(vA)}, 0xff800000")
        e(f"s_mov_b32 {sr(sT1)}, 0")
        e.label("L_max")
        e(f"s_add_u32 {sr(sT2)}, {sr(sT0)}, {sr(sT1)}")
        e(f"buffer_load_dwordx4 {vr(K,4)}, {vr(vL16)}, {sr(S_WS,4)}, {sr(sT2)} offen sc1")
        e("s_waitcnt vmcnt(0)")
        e(f"v_mfma_f32_32x32x16_bf16 {vr(S,16)}, {vr(K,4)}, {vr(Q,4)}, 0")
        e("s_nop 15")
        e("s_nop 3")
        for i in range(8):
            e(f"v_max3_f32 {vr(vA)}, {vr(vA)}, {vr(S+2*i)}, {vr(S+2*i+1)}")
        e(f"s_add_u32 {sr(sT1)}, {sr(sT1)}, 0x400")
        e(f"s_cmp_lt_u32 {sr(sT1)}, 0x10000")
        e("s_cbranch_scc1 L_max")
        e(f"v_mov_b32 {vr(vB)}, {vr(vA)}")
        e("s_nop 1")
        e(f"v_permlane32_swap_b32 {vr(vA)}, {vr(vB)}")
        e("s_nop 1")
        e(f"v_max_f32 {vr(vA)}, {vr(vA)}, {vr(vB)}")
        for i in range(16):
            e(f"v_sub_f32 {vr(S+16+i)}, 0, {vr(vA)}")
        for i in range(16):
            e(f"v_mov_b32 {vr(O+i)}, 0")
        e(f"s_mov_b32 {sr(sT1)}, 0")
        e.label("L_sum")
        e(f"s_add_u32 {sr(sT2)}, {sr(sT0)}, {sr(sT1)}")
        e(f"s_add_u32 {sr(sT3)}, {sr(sT2)}, {VF-KF}")
        e(f"buffer_load_dwordx4 {vr(K,4)}, {vr(vL16)}, {sr(S_WS,4)}, {sr(sT2)} offen sc1")
        e(f"s_mov_b64 exec, {sr(sMASK,2)}")
        e(f"buffer_load_dwordx4 {vr(V,4)}, {vr(vKV)}, {sr(S_WS,4)}, {sr(sT3)} offen sc1")
        e(f"buffer_load_dwordx4 {vr(V+4,4)}, {vr(vKV)}, {sr(S_WS,4)}, {sr(sT3)} offen offset:512 sc1")
        e("s_mov_b64 exec, -1")
        e("s_waitcnt vmcnt(0)")
        e(f"v_mfma_f32_32x32x16_bf16 {vr(S,16)}, {vr(K,4)}, {vr(Q,4)}, {vr(S+16,16)}")
        e("s_nop 15")
        e("s_nop 3")
        for i in range(16):
            e(f"v_exp_f32 {vr(S+i)}, {vr(S+i)}")
        e("s_nop 0")
        for i in range(8):
            e(f"v_cvt_pk_bf16_f32 {vr(P+i)}, {vr(S+2*i)}, {vr(S+2*i+1)}")
        e("s_nop 1")
        e(f"v_mfma_f32_32x32x16_bf16 {vr(O,16)}, {vr(V,4)}, {vr(P,4)}, {vr(O,16)}")
        e(f"v_mfma_f32_32x32x16_bf16 {vr(O,16)}, {vr(V+4,4)}, {vr(P+4,4)}, {vr(O,16)}")
        e(f"s_add_u32 {sr(sT1)}, {sr(sT1)}, 0x400")
        e(f"s_cmp_lt_u32 {sr(sT1)}, 0x10000")
        e("s_cbranch_scc1 L_sum")
        e("s_nop 15")
        e("s_nop 3")
        e.vm = saved

    def p3(self):
        e = self.e
        AB, AA = 16, 48
        AF = 80
        OFR = H
        self.p3_bases()
        def rd(r):
            buf = AF + 8*(r % 2); sl = r % 20
            ffn = r < 22
            hi = sl // 8
            bases = self.p3base[(ffn, hi)]
            du = 512 if ffn else 1024
            for nt in range(2):
                for u in range(2):
                    e.ds(f"ds_read_b64_tr_b16 {vr(buf+4*nt+2*u,2)}, {vr(bases[nt])} offset:{(sl % 8)*RSLOT + u*du}", ("a", r))
        def mm(r):
            buf = AF + 8*(r % 2)
            ffn = r < 22
            acc = AB if ffn else AA
            bop = vr(H+4*r, 4) if ffn else vr(OFR+4*(r-22), 4)
            first = r == 0 or r == 22
            for nt in range(2):
                c = "0" if first else vr(acc+16*nt, 16)
                e(f"v_mfma_f32_32x32x16_bf16 {vr(acc+16*nt,16)}, {vr(buf+4*nt,4)}, {bop}, {c}")
        def barrier():
            e("s_barrier")
        rd(0)
        for r in range(30):
            if r == 4:
                e.wait_lg_all(); barrier()
                for q in (17, 18, 19, 20, 21, 22, 23):
                    self.dma_round(q)
                rd(r)
            if r == 10:
                e.wait_lg_all(); barrier()
                for q in range(24, 30):
                    self.dma_round(q)
                rd(r)
            if r == 8:
                e.wait_vm("ost")
                e(f"s_lshl_b32 {sr(sT0)}, {sr(sJ)}, 6")
                e(f"s_lshl_b32 {sr(sT1)}, {sr(sW)}, 3")
                e(f"s_add_u32 {sr(sT0)}, {sr(sT0)}, {sr(sT1)}")
                e(f"s_add_u32 {sr(sT0)}, {sr(sT0)}, {sr(sK)}")
                e(f"s_lshl_b32 {sr(sT0)}, {sr(sT0)}, 2")
                e(f"s_add_u32 {sr(sT0)}, {sr(sT0)}, {FO}")
                self.flag_store(sT0)
            if r == 15:
                e.wait_lg_all()
                e(f"s_lshl_b32 {sr(sT0)}, {sr(sJP)}, 6")
                e(f"s_lshl_b32 {sr(sT1)}, {sr(sW)}, 3")
                e(f"s_add_u32 {sr(sT0)}, {sr(sT0)}, {sr(sT1)}")
                e(f"s_lshl_b32 {sr(sT0)}, {sr(sT0)}, 2")
                e(f"s_add_u32 {sr(sT0)}, {sr(sT0)}, {FO}")
                self.stamp()
                self.poll_issue("o", sT0, 8, vL4)
                self.poll_check("o", sT0, 8, vL4)
                self.stamp()
                e(f"s_lshl_b32 {sr(sT0)}, {sr(sJP)}, 1")
                e(f"s_add_u32 {sr(sT0)}, {sr(sT0)}, {sr(sB)}")
                e(f"s_lshl_b32 {sr(sT0)}, {sr(sT0)}, 5")
                e(f"s_add_u32 {sr(sT0)}, {sr(sT0)}, {sr(sHD)}")
                e(f"s_lshl_b32 {sr(sT0)}, {sr(sT0)}, 10")
                e(f"s_add_u32 {sr(sT0)}, {sr(sT0)}, {OF}")
                for q in range(8):
                    e(f"s_add_u32 {sr(sT1)}, {sr(sT0)}, {q*4096}")
                    e.vmem(f"buffer_load_dwordx4 {vr(OFR+4*q,4)}, {vr(vL16)}, {sr(S_WS,4)}, {sr(sT1)} offen sc1", ("o", q))
                rd(r)
            if r == 17:
                e.wait_lg_all()
                e.wait_vm([("r", q) for q in range(17, 22)])
                barrier()
                rd(r)
            if r == 22:
                e.wait_lg_all()
                e.wait_vm([("r", q) for q in range(22, 30)])
                barrier()
                rd(r)
            nxt = r + 1
            if nxt < 30 and nxt not in (4, 10, 15, 17, 22):
                rd(nxt)
            e.wait_lg(("a", r))
            if r == 21:
                e(f"s_cmp_ge_u32 {sr(sHD)}, 2")
                e("s_cbranch_scc1 L_skip21")
                mm(r)
                e.label("L_skip21")
            else:
                if r >= 22:
                    e.wait_vm(("o", r - 22))
                mm(r)
        self.stamp()
        e("s_nop 15")
        e(f"v_sub_f32 {vr(vA)}, 1.0, {vr(vG)}")
        e(f"v_cvt_pk_bf16_f32 {vr(vA)}, {vr(vA)}, {vr(vA)}")
        e(f"v_lshlrev_b32 {vr(vA)}, 16, {vr(vA)}")
        for i in range(32):
            e(f"v_mul_f32 {vr(AB+i)}, {vr(AB+i)}, {vr(vA)}")
            e(f"v_fmac_f32 {vr(AB+i)}, {vr(AA+i)}, {vr(vG)}")
        e("s_barrier")
        e(f"s_lshl_b32 {sr(sT0)}, {sr(sW)}, 13")
        e(f"v_add_u32 {vr(vB)}, {sr(sT0)}, {vr(vL16)}")
        for q in range(8):
            e(f"ds_write_b128 {vr(vB)}, {vr(AB+4*q,4)} offset:{q*1024}")
        e("s_waitcnt lgkmcnt(0)")
        e("s_barrier")
        e(f"s_lshl_b32 {sr(sT0)}, {sr(sB)}, 13")
        e(f"s_lshl_b32 {sr(sT1)}, {sr(sHD)}, 11")
        e(f"s_add_u32 {sr(sT0)}, {sr(sT0)}, {sr(sT1)}")
        e(f"v_add_u32 {vr(vB)}, {sr(sT0)}, {vr(vL16)}")
        for kq in range(4):
            for h in range(2):
                e.ds(f"ds_read_b128 {vr(AA+8*kq+4*h,4)}, {vr(vB)} offset:{kq*16384 + h*1024}", "red")
        e.wait_lg("red")
        for i in range(8):
            e(f"v_add_f32 {vr(AA+i)}, {vr(AA+i)}, {vr(AA+8+i)}")
            e(f"v_add_f32 {vr(AA+16+i)}, {vr(AA+16+i)}, {vr(AA+24+i)}")
        for i in range(8):
            e(f"v_add_f32 {vr(AA+i)}, {vr(AA+i)}, {vr(AA+16+i)}")
        for i in range(4):
            e(f"v_cvt_pk_bf16_f32 {vr(AB+i)}, {vr(AA+2*i)}, {vr(AA+2*i+1)}")
        e("s_nop 1")
        e(f"v_permlane32_swap_b32 {vr(AB)}, {vr(AB+2)}")
        e(f"v_permlane32_swap_b32 {vr(AB+1)}, {vr(AB+3)}")
        e(f"v_and_b32 {vr(vB)}, 31, {vr(vLANE)}")
        e(f"v_lshlrev_b32 {vr(vB)}, 10, {vr(vB)}")
        e(f"v_lshrrev_b32 {vr(vC)}, 5, {vr(vLANE)}")
        e(f"v_lshl_add_u32 {vr(vB)}, {vr(vC)}, 4, {vr(vB)}")
        e(f"s_lshl_b32 {sr(sT0)}, {sr(sJP)}, 16")
        e(f"s_lshl_b32 {sr(sT1)}, {sr(sB)}, 15")
        e(f"s_add_u32 {sr(sT0)}, {sr(sT0)}, {sr(sT1)}")
        e(f"s_lshl_b32 {sr(sT1)}, {sr(sNB)}, 7")
        e(f"s_add_u32 {sr(sT0)}, {sr(sT0)}, {sr(sT1)}")
        e(f"s_lshl_b32 {sr(sT1)}, {sr(sHD)}, 5")
        e(f"s_add_u32 {sr(sT0)}, {sr(sT0)}, {sr(sT1)}")
        e.vmem(f"buffer_store_dwordx4 {vr(AB,4)}, {vr(vB)}, {sr(S_OUT,4)}, {sr(sT0)} offen", "out")

    def p3_bases(self):
        e = self.e
        self.p3base = {(True, 0): (vF0, vF1), (False, 0): (vO0, vO1)}
        r = 96
        for ffn, (a0, a1) in ((True, (vF0, vF1)), (False, (vO0, vO1))):
            for hi in (1, 2):
                e(f"v_add_u32 {vr(r)}, {hi*8*RSLOT}, {vr(a0)}")
                e(f"v_add_u32 {vr(r+1)}, {hi*8*RSLOT}, {vr(a1)}")
                self.p3base[(ffn, hi)] = (r, r + 1)
                r += 2

    def finish(self):
        e = self.e
        e("s_cmp_lg_u32 s2, 0")
        e("s_cbranch_scc1 L_noepoch")
        e(f"s_cmp_lg_u32 {sr(sW)}, 0")
        e("s_cbranch_scc1 L_noepoch")
        e(f"s_mov_b32 {sr(sT0)}, {EPOCH}")
        self.flag_store(sT0)
        e.label("L_noepoch")
        if self.prof:
            self.stamp()
            e(f"s_lshl_b32 {sr(sT0)}, s2, 3")
            e(f"s_add_u32 {sr(sT0)}, {sr(sT0)}, {sr(sW)}")
            e(f"s_lshl_b32 {sr(sT0)}, {sr(sT0)}, 6")
            e(f"s_add_u32 {sr(sT0)}, {sr(sT0)}, {PROF}")
            e(f"v_mov_b32 {vr(vB)}, 0")
            e("s_mov_b64 exec, 1")
            for i in range(self.nst):
                e(f"v_mov_b32 {vr(vA)}, {sr(sST+i)}")
                e(f"buffer_store_dword {vr(vA)}, {vr(vB)}, {sr(S_WS,4)}, {sr(sT0)} offen offset:{4*i}")
                e("s_nop 1")
            e("s_mov_b64 exec, -1")

    def build(self):
        e = self.e
        self.stamp_first = None
        self.prologue()
        self.stamp()
        self.p1()
        self.gate()
        e.wait_lg_all()
        e("s_barrier")
        e(f"s_lshl_b32 {sr(sT0)}, {sr(sW)}, 10")
        e(f"s_add_u32 {sr(sT0)}, {sr(sT0)}, {QEX}")
        e(f"v_add_u32 {vr(vC)}, {sr(sT0)}, {vr(vL16)}")
        e(f"ds_write_b128 {vr(vC)}, {vr(QF,4)}")
        if self.stop != "p1":
            self.poll_check("a", sOFFK, 32, vL4)
            self.att_prefetch()
        self.p1b_epilogue()
        e("s_waitcnt lgkmcnt(0)")
        e("s_barrier")
        if self.stop == "p1":
            e.wait_vm_all()
            self.publish_h()
            e(f"s_lshl_b32 {sr(sT0)}, s2, 3")
            e(f"s_add_u32 {sr(sT0)}, {sr(sT0)}, {sr(sW)}")
            e(f"s_lshl_b32 {sr(sT0)}, {sr(sT0)}, 10")
            e(f"s_add_u32 {sr(sT0)}, {sr(sT0)}, {OF}")
            e.vmem(f"buffer_store_dwordx4 {vr(QF,4)}, {vr(vL16)}, {sr(S_WS,4)}, {sr(sT0)} offen", "q")
        else:
            e(f"s_lshl_b32 {sr(sT0)}, {sr(sHD)}, 11")
            e(f"s_add_u32 {sr(sT0)}, {sr(sT0)}, {QEX}")
            e(f"v_add_u32 {vr(vC)}, {sr(sT0)}, {vr(vL16)}")
            e.ds(f"ds_read_b128 {vr(Q,4)}, {vr(vC)}", "q")
            e.ds(f"ds_read_b128 {vr(Q+4,4)}, {vr(vC)} offset:1024", "q")
            e.wait_lg("q")
            self.stamp()
            self.attention()
            self.stamp()
            self.att_epilogue()
            self.stamp()
            if self.stop == "att":
                e.wait_vm_all()
            else:
                self.p3()
        self.finish()
        e.label("L_end")
        e("s_endpgm")
        e.label("L_code_end")
        pf = []
        for n in range(4):
            pf.append(f"    v_min_u32 {vr(vB)}, L_code_end-L_pc-4, {vr(vA)}")
            pf.append(f"    global_load_dword {vr(vPF)}, {vr(vB)}, s[84:85]")
            pf.append(f"    v_add_u32 {vr(vA)}, 0x2000, {vr(vA)}")
        e.out[self.pf_marker] = "\n".join(pf)
        head = [f"; Fused gated MHA block + SiLU feed-forward, one launch; generated by work/gen.py",
                f"; @launch grid=(256,1,1) block=(512,1,1) lds={LDS_BYTES}",
                '.amdgcn_target "amdgcn-amd-amdhsa--gfx950"', ".text", f".globl {KNAME}", ".p2align 8",
                f".type {KNAME},@function", f"{KNAME}:"]
        tail = f"""
.section .rodata,"a"
.p2align 6
.amdhsa_kernel {KNAME}
  .amdhsa_next_free_vgpr {NVGPR}
  .amdhsa_next_free_sgpr 102
  .amdhsa_accum_offset {NVGPR}
  .amdhsa_group_segment_fixed_size 0
  .amdhsa_kernarg_size 80
  .amdhsa_user_sgpr_count 2
  .amdhsa_user_sgpr_kernarg_segment_ptr 1
  .amdhsa_system_sgpr_workgroup_id_x 1
  .amdhsa_float_denorm_mode_32 3
.end_amdhsa_kernel
"""
        return "\n".join(head) + "\n" + e.text() + tail


if __name__ == "__main__":
    import argparse
    ap = argparse.ArgumentParser()
    ap.add_argument("-o", default="cdna_kernels/" + NAME + ".s")
    ap.add_argument("--stop")
    ap.add_argument("--prof", action="store_true")
    a = ap.parse_args()
    open(a.o, "w").write(Gen(a.stop, a.prof).build())
```

```python
import sys
from kasm import Asm, vr, sr

NAME = "gated_mix__mha_block__dense_activation_silu__prompt"
KNAME = NAME + "_kernel"

EPOCH = 0x0
FA = 0x1000
FH = 0x4000
FO = 0x6000
GB = 0x8000
KF = 0x100000
VF = 0x300000
OF = 0x500000
HF = 0x700000
PROF = 0xC80000
WS_SIZE = 0xD00000
OOB = 0x40000000

WSLOT = 24576
XBASE = 98304
RSLOT = 8192
EXCH = 17 * RSLOT
QEX = 155648
LDS_BYTES = 163840

QSCALE = 0.25 * 1.4426950408889634
SPIN_MAX = 400000

S_X, S_WQKV, S_W1, S_W2, S_WO, S_OUT, S_WS, S_GATE, S_K, S_V = 4, 8, 12, 16, 20, 24, 28, 32, 36, 40
sK, sJ, sW, sNONCE = 44, 45, 46, 47
sT0, sT1, sT2, sT3 = 48, 49, 50, 51
sMASK = 52
sXB, sWB = 54, 55
sHD, sB = 56, 57
sI, sT = 58, 59
sOFFA, sOFFB = 60, 61
sJP, sNB = 62, 63
sARG = 64
sC0, sC1, sC2, sC3 = 84, 85, 86, 87
sOFFK = 3
sJJ = 88
sST = 88

vLANE, vL16 = 1, 2
vA, vB, vC = 3, 4, 5
vKV = 6
vG = 7
Q, S, P, O, K, V, H = 8, 16, 48, 56, 88, 104, 136
ACC = 16
XF = 40
WF = 56
QF = 80
TMP = 84
GW = 88
vDX = 224
vDW = 225
vD1 = 228
vX0, vX1 = 231, 232
vWA, vWA2 = 233, 234
vWB = 235
vD2 = 241
vF0, vF1, vO0, vO1 = 242, 243, 244, 245
vE0, vE1 = 246, 247
vPF = 250
vFL = 251
vL4 = 252
vST = 253
NVGPR = 256


def fbits(x):
    import struct
    return "0x%08x" % struct.unpack("<I", struct.pack("<f", x))[0]


class Gen:
    def __init__(self, stop=None, prof=False, opts=None):
        self.o = dict(map='half')
        self.o.update(opts or {})
        self.e = Asm()
        self.stop = stop
        self.prof = prof
        self.stamps = []

    def stamp(self, name):
        if not self.prof:
            return
        e = self.e
        e("s_memtime s[100:101]")
        e.wait_lg_all()
        e(f"v_writelane_b32 {vr(vST)}, s100, {len(self.stamps)}")
        self.stamps.append(name)

    def rt_stamp(self, lane):
        if not self.prof:
            return
        e = self.e
        e("s_memrealtime s[100:101]")
        e.wait_lg_all()
        e(f"v_writelane_b32 {vr(vST)}, s100, {lane}")

    def srd(self, base, argoff, size):
        e = self.e
        e(f"s_mov_b32 {sr(base)}, {sr(sARG + argoff)}")
        e(f"s_mov_b32 {sr(base+1)}, {sr(sARG + argoff + 1)}")
        e(f"s_mov_b32 {sr(base+2)}, {size}")
        e(f"s_mov_b32 {sr(base+3)}, 0x20000")

    def prologue(self):
        e = self.e
        self.rt_stamp(62)
        self.stamp("start")
        e(f"s_load_dwordx16 s[64:79], s[0:1], 0")
        e(f"s_load_dwordx4 s[80:83], s[0:1], 64")
        e("s_cmp_ge_u32 s2, 256")
        e("s_cbranch_scc1 L_end")
        e(f"v_lshrrev_b32 {vr(vA)}, 6, v0")
        e(f"v_and_b32 {vr(vLANE)}, 63, v0")
        e(f"v_readfirstlane_b32 {sr(sW)}, {vr(vA)}")
        if self.o["map"] == "half":
            e(f"s_and_b32 {sr(sK)}, s2, 6")
            e(f"s_bfe_u32 {sr(sT0)}, s2, 0x10003")
            e(f"s_or_b32 {sr(sK)}, {sr(sK)}, {sr(sT0)}")
            e(f"s_and_b32 {sr(sJ)}, s2, 1")
            e(f"s_lshl_b32 {sr(sJ)}, {sr(sJ)}, 4")
            e(f"s_lshr_b32 {sr(sJJ)}, s2, 4")
            e(f"s_or_b32 {sr(sJ)}, {sr(sJ)}, {sr(sJJ)}")
        else:
            e(f"s_and_b32 {sr(sK)}, s2, 7")
            e(f"s_lshr_b32 {sr(sJ)}, s2, 3")
            e(f"s_lshr_b32 {sr(sJJ)}, s2, 3")
        e(f"v_lshlrev_b32 {vr(vL16)}, 4, {vr(vLANE)}")
        e(f"v_lshlrev_b32 {vr(vL4)}, 2, {vr(vLANE)}")
        e(f"v_lshrrev_b32 {vr(vA)}, 4, {vr(vLANE)}")
        e(f"s_and_b32 {sr(sB)}, {sr(sW)}, 1")
        e(f"s_lshr_b32 {sr(sHD)}, {sr(sW)}, 1")
        e(f"s_lshl_b32 {sr(sT0)}, {sr(sB)}, 2")
        e(f"v_or_b32 {vr(vA)}, {sr(sT0)}, {vr(vA)}")
        e(f"v_and_b32 {vr(vB)}, 7, {vr(vLANE)}")
        e(f"v_xor_b32 {vr(vA)}, {vr(vA)}, {vr(vB)}")
        e(f"v_lshlrev_b32 {vr(vA)}, 4, {vr(vA)}")
        e(f"v_lshrrev_b32 {vr(vB)}, 3, {vr(vLANE)}")
        e(f"v_lshl_add_u32 {vr(vA)}, {vr(vB)}, 10, {vr(vA)}")
        e(f"s_lshl_b32 {sr(sT0)}, {sr(sJ)}, 16")
        e(f"s_lshl_b32 {sr(sT1)}, {sr(sW)}, 13")
        e(f"s_add_u32 {sr(sT0)}, {sr(sT0)}, {sr(sT1)}")
        e(f"v_add_u32 {vr(vDX)}, {sr(sT0)}, {vr(vA)}")
        e(f"s_lshl_b32 {sr(sXB)}, {sr(sW)}, 10")
        e(f"s_add_u32 {sr(sXB)}, {sr(sXB)}, {XBASE}")
        e(f"s_mul_i32 {sr(sWB)}, {sr(sW)}, 3072")
        e(f"s_mul_i32 {sr(sT0)}, {sr(sK)}, 11")
        e(f"s_min_u32 {sr(sOFFA)}, {sr(sT0)}, 76")
        e(f"s_cmp_lt_u32 {sr(sK)}, 6")
        e(f"s_cselect_b32 {sr(sOFFB)}, 11, 10")
        e(f"s_cmp_gt_u32 {sr(sW)}, 2")
        e("s_cbranch_scc1 L_t_none")
        e(f"s_cmp_eq_u32 {sr(sW)}, 2")
        e("s_cbranch_scc1 L_t_code")
        e(f"v_min_u32 {vr(vA)}, 47, {vr(vLANE)}")
        e(f"v_mul_u32_u24 {vr(vB)}, 21846, {vr(vA)}")
        e(f"v_lshrrev_b32 {vr(vB)}, 16, {vr(vB)}")
        e(f"v_mul_u32_u24 {vr(vC)}, 3, {vr(vB)}")
        e(f"v_sub_u32 {vr(vA)}, {vr(vA)}, {vr(vC)}")
        e(f"v_lshlrev_b32 {vr(vA)}, 10, {vr(vA)}")
        e(f"v_mul_u32_u24 {vr(vB)}, 3072, {vr(vB)}")
        if self.o["map"] == "half":
            e(f"s_lshl_b32 {sr(sT0)}, {sr(sJJ)}, 1")
            e(f"s_add_u32 {sr(sT0)}, {sr(sT0)}, {sr(sW)}")
            e(f"s_mul_i32 {sr(sT0)}, {sr(sT0)}, {16*3072}")
        else:
            e(f"s_mul_i32 {sr(sT0)}, {sr(sJJ)}, {16*3072}")
        e(f"s_lshl_b32 {sr(sT1)}, {sr(sK)}, 7")
        e(f"s_add_u32 {sr(sT0)}, {sr(sT0)}, {sr(sT1)}")
        e(f"v_add3_u32 {vr(vA)}, {vr(vA)}, {vr(vB)}, {sr(sT0)}")
        e("s_waitcnt lgkmcnt(0)")
        self.srd(S_WQKV, 2, 512*1536*2)
        e(f"buffer_load_dword {vr(vPF)}, {vr(vA)}, {sr(S_WQKV,4)}, 0 offen")
        e("s_branch L_t_done")
        e.label("L_t_code")
        e("s_getpc_b64 s[100:101]")
        e.label("L_pc")
        e(f"s_lshr_b32 {sr(sT0)}, s2, 3")
        e(f"s_lshl_b32 {sr(sT0)}, {sr(sT0)}, 10")
        e(f"v_and_b32 {vr(vA)}, 7, {vr(vLANE)}")
        e(f"v_lshlrev_b32 {vr(vA)}, 7, {vr(vA)}")
        e(f"v_add_u32 {vr(vA)}, {sr(sT0)}, {vr(vA)}")
        e(f"v_min_u32 {vr(vA)}, L_code_end-L_pc-4, {vr(vA)}")
        e("s_mov_b64 exec, 0xff")
        e(f"global_load_dword {vr(vPF)}, {vr(vA)}, s[100:101]")
        e("s_mov_b64 exec, -1")
        e.label("L_t_none")
        e("s_waitcnt lgkmcnt(0)")
        e.label("L_t_done")
        self.stamp("kernarg")
        self.srd(S_X, 0, 2048*512*2)
        for c in range(8):
            self.dma_x(c)
        self.srd(S_WQKV, 2, 512*1536*2)
        self.srd(S_W1, 8, 512*1376*2)
        self.srd(S_GATE, 12, 1024)
        self.srd(S_WS, 18, WS_SIZE)
        e.vmem(f"buffer_load_dwordx4 {vr(GW,4)}, {vr(vL16)}, {sr(S_GATE,4)}, 0 offen", "gw")
        e(f"v_mov_b32 {vr(vA)}, {EPOCH}")
        e.vmem(f"buffer_load_dword {vr(vFL)}, {vr(vA)}, {sr(S_WS,4)}, 0 offen sc1", "nonce")
        self.stamp("x-issued")
        e(f"s_lshl_b32 {sr(sT2)}, {sr(sB)}, 2")
        e(f"s_mul_i32 {sr(sT0)}, {sr(sW)}, {8*3072}")
        e(f"s_lshl_b32 {sr(sT1)}, {sr(sK)}, 7")
        e(f"s_add_u32 {sr(sT0)}, {sr(sT0)}, {sr(sT1)}")
        for i in range(3):
            r, c = vD1 + i, TMP + i
            e(f"v_add_u32 {vr(vA)}, {64*i}, {vr(vLANE)}")
            e(f"v_mul_u32_u24 {vr(r)}, 2731, {vr(vA)}")
            e(f"v_lshrrev_b32 {vr(r)}, 16, {vr(r)}")
            e(f"v_mul_u32_u24 {vr(vB)}, 24, {vr(r)}")
            e(f"v_sub_u32 {vr(vA)}, {vr(vA)}, {vr(vB)}")
            e(f"v_and_b32 {vr(vB)}, 2, {vr(r)}")
            e(f"v_or_b32 {vr(vB)}, {sr(sT2)}, {vr(vB)}")
            e(f"v_xor_b32 {vr(c)}, {vr(vA)}, {vr(vB)}")
            e(f"v_lshrrev_b32 {vr(vA)}, 3, {vr(c)}")
            e(f"v_lshlrev_b32 {vr(vA)}, 10, {vr(vA)}")
            e(f"v_and_b32 {vr(vB)}, 7, {vr(c)}")
            e(f"v_lshl_add_u32 {vr(vA)}, {vr(vB)}, 4, {vr(vA)}")
            e(f"v_mul_u32_u24 {vr(vB)}, 3072, {vr(r)}")
            e(f"v_add3_u32 {vr(vDW+i)}, {vr(vA)}, {vr(vB)}, {sr(sT0)}")
        self.dma_w(0)
        self.stamp("w0-issued")
        self.dma_w(1)
        e(f"v_and_b32 {vr(vA)}, 3, {vr(vLANE)}")
        e(f"v_lshlrev_b32 {vr(vA)}, 7, {vr(vA)}")
        e(f"v_min_u32 {vr(vA)}, 348, {vr(vA)}")
        e(f"v_lshrrev_b32 {vr(vB)}, 2, {vr(vLANE)}")
        e(f"v_mul_u32_u24 {vr(vB)}, 2752, {vr(vB)}")
        if self.o["map"] == "half":
            e(f"s_lshl_b32 {sr(sT0)}, {sr(sJJ)}, 3")
            e(f"s_add_u32 {sr(sT0)}, {sr(sT0)}, {sr(sW)}")
            e(f"s_mul_i32 {sr(sT0)}, {sr(sT0)}, {4*2752}")
        else:
            e(f"s_lshl_b32 {sr(sT0)}, {sr(sJJ)}, 3")
            e(f"s_add_u32 {sr(sT0)}, {sr(sT0)}, {sr(sW)}")
            e(f"s_mul_i32 {sr(sT0)}, {sr(sT0)}, {2*2752}")
        e(f"s_lshl_b32 {sr(sT1)}, {sr(sOFFA)}, 5")
        e(f"s_add_u32 {sr(sT0)}, {sr(sT0)}, {sr(sT1)}")
        e(f"v_add3_u32 {vr(vA)}, {vr(vA)}, {vr(vB)}, {sr(sT0)}")
        e("s_mov_b64 exec, 0xffff" if self.o["map"] == "half" else "s_mov_b64 exec, 0xff")
        e.vmem(f"buffer_load_dword {vr(vPF)}, {vr(vA)}, {sr(S_W1,4)}, 0 offen", "touch")
        e("s_mov_b64 exec, -1")
        self.stamp("w1-issued")
        self.srd(S_W2, 10, 1376*512*2)
        self.srd(S_WO, 4, 512*512*2)
        self.srd(S_OUT, 14, 2048*512*2)
        e(f"s_mul_i32 {sr(sT0)}, {sr(sW)}, {8*2752}")
        e(f"s_lshl_b32 {sr(sT1)}, {sr(sOFFA)}, 5")
        e(f"s_add_u32 {sr(sT0)}, {sr(sT0)}, {sr(sT1)}")
        e(f"s_lshl_b32 {sr(sT1)}, {sr(sOFFB)}, 1")
        for i in range(3):
            r, c = vD1 + i, TMP + i
            e(f"v_mul_u32_u24 {vr(r)}, 2752, {vr(r)}")
            e(f"v_lshl_add_u32 {vr(r)}, {vr(c)}, 4, {vr(r)}")
            e(f"v_add_u32 {vr(r)}, {sr(sT0)}, {vr(r)}")
            e(f"v_cmp_gt_u32 vcc, {sr(sT1)}, {vr(c)}")
            e(f"v_mov_b32 {vr(vA)}, {OOB}")
            e("s_nop 0")
            e(f"v_cndmask_b32 {vr(r)}, {vr(vA)}, {vr(r)}, vcc")
        e(f"v_and_b32 {vr(vA)}, 15, {vr(vLANE)}")
        e(f"v_lshrrev_b32 {vr(vB)}, 4, {vr(vLANE)}")
        e(f"v_lshrrev_b32 {vr(vC)}, 1, {vr(vA)}")
        e(f"v_xor_b32 {vr(vC)}, {vr(vC)}, {vr(vB)}")
        e(f"v_lshlrev_b32 {vr(vC)}, 4, {vr(vC)}")
        e(f"v_lshl_add_u32 {vr(vC)}, {vr(vA)}, 7, {vr(vC)}")
        e(f"s_lshl_b32 {sr(sT0)}, {sr(sB)}, 12")
        e(f"s_add_u32 {sr(sT0)}, {sr(sT0)}, {XBASE}")
        e(f"v_add_u32 {vr(vX0)}, {sr(sT0)}, {vr(vC)}")
        e(f"v_xor_b32 {vr(vX1)}, 64, {vr(vX0)}")
        e(f"v_lshrrev_b32 {vr(vC)}, 2, {vr(vA)}")
        e(f"v_lshl_add_u32 {vr(vC)}, {vr(vB)}, 3, {vr(vC)}")
        e(f"v_mul_u32_u24 {vr(vC)}, 384, {vr(vC)}")
        e(f"v_and_b32 {vr(TMP)}, 3, {vr(vA)}")
        e(f"v_lshl_add_u32 {vr(vC)}, {vr(TMP)}, 3, {vr(vC)}")
        e(f"v_lshrrev_b32 {vr(TMP)}, 3, {vr(vA)}")
        e(f"v_and_b32 {vr(TMP+1)}, 1, {vr(vB)}")
        e(f"v_lshl_add_u32 {vr(TMP)}, {vr(TMP+1)}, 1, {vr(TMP)}")
        e(f"v_xor_b32 {vr(TMP+1)}, {sr(sHD)}, {vr(TMP)}")
        e(f"v_lshl_add_u32 {vr(vWA)}, {vr(TMP+1)}, 5, {vr(vC)}")
        e(f"v_add_u32 {vr(vWA2)}, {2*WSLOT}, {vr(vWA)}")
        e(f"s_mul_i32 {sr(sT0)}, {sr(sHD)}, 3")
        for i in range(3):
            e(f"s_add_u32 {sr(sT1)}, {sr(sT0)}, {i}")
            e(f"v_xor_b32 {vr(TMP+1)}, {sr(sT1)}, {vr(TMP)}")
            e(f"v_lshl_add_u32 {vr(vWB+2*i)}, {vr(TMP+1)}, 5, {vr(vC)}")
            e(f"v_add_u32 {vr(vWB+2*i+1)}, {2*WSLOT}, {vr(vWB+2*i)}")
        e(f"v_lshrrev_b32 {vr(vC)}, 5, {vr(vLANE)}")
        e(f"v_lshlrev_b32 {vr(vC)}, 8, {vr(vC)}")
        e(f"v_lshl_add_u32 {vr(vKV)}, {vr(vA)}, 4, {vr(vC)}")
        e(f"s_mov_b32 {sr(sMASK)}, 0xffff")
        e(f"s_mov_b32 {sr(sMASK+1)}, 0xffff")
        for i in range(32):
            e(f"v_mov_b32 {vr(V+i)}, 0x3f803f80")
        e(f"s_bfe_u32 {sr(sT0)}, s2, 0x20003")
        e(f"s_and_b32 {sr(sJP)}, s2, 7")
        e(f"s_lshl_b32 {sr(sJP)}, {sr(sJP)}, 2")
        e(f"s_add_u32 {sr(sJP)}, {sr(sJP)}, {sr(sT0)}")
        e(f"s_lshr_b32 {sr(sNB)}, s2, 5")
        e(f"v_lshrrev_b32 {vr(vC)}, 4, {vr(vLANE)}")
        e(f"v_and_b32 {vr(vC)}, 1, {vr(vC)}")
        e(f"v_lshlrev_b32 {vr(vC)}, 2, {vr(vC)}")
        e(f"v_and_b32 {vr(TMP)}, 7, {vr(vLANE)}")
        e(f"v_xor_b32 {vr(vC)}, {vr(vC)}, {vr(TMP)}")
        e(f"v_lshlrev_b32 {vr(vC)}, 4, {vr(vC)}")
        e(f"v_lshrrev_b32 {vr(TMP)}, 3, {vr(vLANE)}")
        e(f"v_lshl_add_u32 {vr(vC)}, {vr(TMP)}, 10, {vr(vC)}")
        e(f"s_lshl_b32 {sr(sT0)}, {sr(sW)}, 13")
        e(f"s_lshl_b32 {sr(sT1)}, {sr(sNB)}, 7")
        e(f"s_add_u32 {sr(sT0)}, {sr(sT0)}, {sr(sT1)}")
        e(f"v_add_u32 {vr(vD2)}, {sr(sT0)}, {vr(vC)}")
        e(f"v_lshrrev_b32 {vr(vC)}, 2, {vr(vA)}")
        e(f"v_lshlrev_b32 {vr(vC)}, 7, {vr(vC)}")
        e(f"v_and_b32 {vr(TMP)}, 1, {vr(vB)}")
        e(f"v_lshl_add_u32 {vr(vC)}, {vr(TMP)}, 5, {vr(vC)}")
        e(f"v_and_b32 {vr(TMP)}, 3, {vr(vA)}")
        e(f"v_lshl_add_u32 {vr(vC)}, {vr(TMP)}, 3, {vr(vC)}")
        e(f"v_lshrrev_b32 {vr(TMP)}, 3, {vr(vA)}")
        e(f"v_lshl_add_u32 {vr(vC)}, {vr(TMP)}, 6, {vr(vC)}")
        e(f"s_lshl_b32 {sr(sT0)}, {sr(sHD)}, 11")
        e(f"v_add_u32 {vr(vC)}, {sr(sT0)}, {vr(vC)}")
        e(f"v_lshrrev_b32 {vr(TMP)}, 5, {vr(vLANE)}")
        e(f"v_lshl_add_u32 {vr(vF0)}, {vr(TMP)}, 10, {vr(vC)}")
        e(f"v_xor_b32 {vr(vF1)}, 64, {vr(vF0)}")
        e(f"v_lshl_add_u32 {vr(vO0)}, {vr(TMP)}, 9, {vr(vC)}")
        e(f"v_xor_b32 {vr(vO1)}, 64, {vr(vO0)}")

    def dma_x(self, c):
        e = self.e
        e(f"s_add_u32 m0, {sr(sXB)}, {c*8192}")
        e(f"s_movk_i32 {sr(sT3)}, {c*128}")
        e.vmem(f"buffer_load_dwordx4 {vr(vDX)}, {sr(S_X,4)}, {sr(sT3)} offen lds", ("x", c))

    def dma_w(self, c):
        e = self.e
        slot = c % 4
        for i in range(3):
            e(f"s_add_u32 m0, {sr(sWB)}, {slot*WSLOT + i*1024}")
            if i == 0:
                e(f"s_mov_b32 {sr(sT3)}, {(c*64*3072) if c < 8 else ((c-8)*64*2752)}")
            else:
                e("s_nop 0")
            if c < 8:
                e.vmem(f"buffer_load_dwordx4 {vr(vDW+i)}, {sr(S_WQKV,4)}, {sr(sT3)} offen lds", ("w", c))
            else:
                e.vmem(f"buffer_load_dwordx4 {vr(vD1+i)}, {sr(S_W1,4)}, {sr(sT3)} offen lds", ("w", c))

    def p1_iter(self, c):
        e = self.e
        slot, kc = c % 4, c % 8
        tags = [("w", c)] + ([("x", c)] if c < 8 else [])
        e.wait_vm(tags)
        if c in (0, 1, 4, 8, 12):
            self.stamp(f"it{c}-data")
        e("s_barrier")

        def rd_x(ks, T):
            e.ds(f"ds_read_b128 {vr(XF+8*ks+4*T,4)}, {vr(vX1 if ks else vX0)} offset:{kc*8192 + T*2048}", ("x", ks))
        def rd_w(ks, g, u):
            if c < 8:
                base = vWA2 if slot >= 2 else vWA
                off = (slot % 2)*WSLOT + ks*12288 + u*1536 + g*128
            else:
                base = vWB + 2*g + (1 if slot >= 2 else 0)
                off = (slot % 2)*WSLOT + ks*12288 + u*1536
            e.ds(f"ds_read_b64_tr_b16 {vr(WF+12*ks+4*g+2*u,2)}, {vr(base)} offset:{off}", ("w", ks, g))
        def mm(ks, g, T):
            acc = vr(ACC + 8*g + 4*T, 4)
            cin = "0" if (kc == 0 and ks == 0) else acc
            w_, x_ = vr(WF+12*ks+4*g, 4), vr(XF+8*ks+4*T, 4)
            a, b = (x_, w_) if (c < 8 and g == 2) else (w_, x_)
            e(f"v_mfma_f32_16x16x32_bf16 {acc}, {a}, {b}, {cin}")

        rd_x(0, 0); rd_x(0, 1)
        for g in range(3):
            rd_w(0, g, 0); rd_w(0, g, 1)
        if c + 2 <= 15 and c != 8:
            self.dma_w(c + 2)
        self.p1_hook(c)
        e.wait_lg(("w", 0, 0))
        mm(0, 0, 0); mm(0, 0, 1)
        rd_x(1, 0); rd_x(1, 1); rd_w(1, 0, 0); rd_w(1, 0, 1)
        e.wait_lg(("w", 0, 1))
        mm(0, 1, 0); mm(0, 1, 1)
        rd_w(1, 1, 0); rd_w(1, 1, 1)
        e.wait_lg(("w", 0, 2))
        mm(0, 2, 0); mm(0, 2, 1)
        rd_w(1, 2, 0); rd_w(1, 2, 1)
        for g in range(3):
            e.wait_lg(("w", 1, g))
            mm(1, g, 0); mm(1, g, 1)
        if c == 7:
            self.dma_w(10)

    def p1_hook(self, c):
        e = self.e
        if c == 1:
            e.wait_vm("nonce")
            e(f"v_readfirstlane_b32 {sr(sNONCE)}, {vr(vFL)}")
            e("s_nop 3")
            e(f"s_add_u32 {sr(sNONCE)}, {sr(sNONCE)}, 1")
        if c == 9:
            self.gate()
        if c == 11:
            e.wait_vm("kst")
            e(f"s_lshl_b32 {sr(sT0)}, {sr(sK)}, 2")
            e(f"s_add_u32 {sr(sT0)}, {sr(sT0)}, {sr(sHD)}")
            e(f"s_lshl_b32 {sr(sT0)}, {sr(sT0)}, 6")
            e(f"s_lshl_b32 {sr(sT1)}, {sr(sJ)}, 1")
            e(f"s_add_u32 {sr(sT0)}, {sr(sT0)}, {sr(sT1)}")
            e(f"s_add_u32 {sr(sT0)}, {sr(sT0)}, {sr(sB)}")
            e(f"s_lshl_b32 {sr(sT0)}, {sr(sT0)}, 2")
            e(f"s_add_u32 {sr(sT0)}, {sr(sT0)}, {FA}")
            self.flag_store(sT0)

    def flag_store(self, soff):
        e = self.e
        e(f"v_mov_b32 {vr(vA)}, {sr(sNONCE)}")
        e(f"v_mov_b32 {vr(vB)}, 0")
        e("s_mov_b64 exec, 1")
        e.vmem(f"buffer_store_dword {vr(vA)}, {vr(vB)}, {sr(S_WS,4)}, {sr(soff)} offen sc1", "flag")
        e("s_mov_b64 exec, -1")

    def set_exec(self, nlanes):
        e = self.e
        if nlanes == 64:
            e("s_mov_b64 exec, -1")
        elif nlanes == 32:
            e("s_mov_b32 exec_hi, 0")
        else:
            e(f"s_mov_b64 exec, {(1 << nlanes) - 1}")

    def poll_issue(self, name, soff, nlanes, vaddr):
        e = self.e
        if nlanes < 64:
            self.set_exec(nlanes)
        e.vmem(f"buffer_load_dword {vr(vFL)}, {vr(vaddr)}, {sr(S_WS,4)}, {sr(soff)} offen sc1", ("poll", name))
        if nlanes < 64:
            self.set_exec(64)

    def poll_check(self, name, soff, nlanes, vaddr):
        e = self.e
        e.wait_vm(("poll", name))
        if nlanes < 64:
            self.set_exec(nlanes)
        e(f"v_cmp_ne_u32 vcc, {sr(sNONCE)}, {vr(vFL)}")
        e(f"s_cbranch_vccz L_polled_{name}")
        e(f"s_mov_b32 {sr(sC0)}, 0")
        e.label(f"L_poll_{name}")
        e("s_sleep 1")
        e(f"buffer_load_dword {vr(vFL)}, {vr(vaddr)}, {sr(S_WS,4)}, {sr(soff)} offen sc1")
        e(f"s_add_u32 {sr(sC0)}, {sr(sC0)}, 1")
        e("s_waitcnt vmcnt(0)")
        e(f"v_cmp_ne_u32 vcc, {sr(sNONCE)}, {vr(vFL)}")
        e(f"s_cmp_ge_u32 {sr(sC0)}, {SPIN_MAX}")
        e(f"s_cbranch_scc1 L_polled_{name}")
        e(f"s_cbranch_vccnz L_poll_{name}")
        e.label(f"L_polled_{name}")
        if nlanes < 64:
            self.set_exec(64)

    def pack_frag(self, dst, acc, swap, scale=None):
        e = self.e
        if scale is not None:
            for i in range(8):
                e(f"v_mul_f32 {vr(acc+i)}, {scale}, {vr(acc+i)}")
        for i in range(4):
            e(f"v_cvt_pk_bf16_f32 {vr(dst+i)}, {vr(acc+2*i)}, {vr(acc+2*i+1)}")
        e("s_nop 1")
        e(f"v_permlane{swap}_swap_b32 {vr(dst)}, {vr(dst+2)}")
        e(f"v_permlane{swap}_swap_b32 {vr(dst+1)}, {vr(dst+3)}")

    def p1a_epilogue(self):
        e = self.e
        e("s_nop 7")
        e(f"s_mov_b32 {sr(sC1)}, {fbits(QSCALE)}")
        e(f"s_lshl_b32 {sr(sT0)}, {sr(sK)}, 2")
        e(f"s_add_u32 {sr(sT0)}, {sr(sT0)}, {sr(sHD)}")
        e(f"s_lshl_b32 {sr(sT0)}, {sr(sT0)}, 6")
        e(f"s_lshl_b32 {sr(sT1)}, {sr(sJ)}, 1")
        e(f"s_add_u32 {sr(sT0)}, {sr(sT0)}, {sr(sT1)}")
        e(f"s_add_u32 {sr(sT0)}, {sr(sT0)}, {sr(sB)}")
        e(f"s_lshl_b32 {sr(sT0)}, {sr(sT0)}, 10")
        e(f"s_add_u32 {sr(sT1)}, {sr(sT0)}, {VF}")
        e(f"s_add_u32 {sr(sT0)}, {sr(sT0)}, {KF}")
        self.pack_frag(XF, ACC + 8, 16)
        self.pack_frag(XF + 4, ACC + 16, 32)
        e("s_nop 0")
        e.vmem(f"buffer_store_dwordx4 {vr(XF,4)}, {vr(vL16)}, {sr(S_WS,4)}, {sr(sT0)} offen sc1", "kst")
        e.vmem(f"buffer_store_dwordx4 {vr(XF+4,4)}, {vr(vL16)}, {sr(S_WS,4)}, {sr(sT1)} offen sc1", "kst")
        self.pack_frag(QF, ACC, 16, scale=sr(sC1))

    def gate(self):
        e = self.e
        e(f"s_lshl_b32 {sr(sT0)}, {sr(sK)}, 3")
        e(f"s_add_u32 {sr(sT0)}, {sr(sT0)}, {sr(sW)}")
        e(f"s_lshr_b32 {sr(sT1)}, {sr(sT0)}, 1")
        e(f"s_and_b32 {sr(sT1)}, {sr(sT1)}, 7")
        e(f"s_lshl_b32 {sr(sT2)}, {sr(sT0)}, 7")
        e(f"s_add_u32 {sr(sT2)}, {sr(sT2)}, {XBASE}")
        e(f"v_and_b32 {vr(vA)}, 7, {vr(vLANE)}")
        e(f"v_xor_b32 {vr(vA)}, {sr(sT1)}, {vr(vA)}")
        e(f"v_lshlrev_b32 {vr(vA)}, 4, {vr(vA)}")
        e(f"v_lshrrev_b32 {vr(vB)}, 3, {vr(vLANE)}")
        e(f"v_lshl_add_u32 {vr(vA)}, {vr(vB)}, 13, {vr(vA)}")
        e(f"v_add_u32 {vr(vA)}, {sr(sT2)}, {vr(vA)}")
        GX = 92
        e.ds(f"ds_read_b128 {vr(GX,4)}, {vr(vA)}", "gx")
        e.wait_vm("gw", lgkm="gx")
        acc = 96
        e(f"v_mov_b32 {vr(acc)}, 0")
        for i in range(4):
            x, w_ = GX + i, GW + i
            e(f"v_lshlrev_b32 {vr(vA)}, 16, {vr(x)}")
            e(f"v_lshlrev_b32 {vr(vB)}, 16, {vr(w_)}")
            e(f"v_and_b32 {vr(x)}, 0xffff0000, {vr(x)}")
            e(f"v_and_b32 {vr(w_)}, 0xffff0000, {vr(w_)}")
            e(f"v_mul_f32 {vr(vA)}, {vr(vA)}, {vr(vB)}")
            e(f"v_mul_f32 {vr(vB)}, {vr(x)}, {vr(w_)}")
            e(f"v_cvt_pk_bf16_f32 {vr(vA)}, {vr(vA)}, {vr(vB)}")
            e(f"v_lshlrev_b32 {vr(vB)}, 16, {vr(vA)}")
            e(f"v_and_b32 {vr(vA)}, 0xffff0000, {vr(vA)}")
            e(f"v_add_f32 {vr(acc)}, {vr(acc)}, {vr(vB)}")
            e(f"v_add_f32 {vr(acc)}, {vr(acc)}, {vr(vA)}")
        e("s_nop 1")
        for ctl in ("row_shr:1", "row_shr:2", "row_shr:4", "row_shr:8", "row_bcast:15 row_mask:0xa", "row_bcast:31 row_mask:0xc"):
            e(f"v_add_f32_dpp {vr(acc)}, {vr(acc)}, {vr(acc)} {ctl} bound_ctrl:0" if "row_shr" in ctl else
              f"v_add_f32_dpp {vr(acc)}, {vr(acc)}, {vr(acc)} {ctl}")
            e("s_nop 1")
        e(f"v_readlane_b32 {sr(sT1)}, {vr(acc)}, 63")
        e("s_nop 1")
        e(f"v_mov_b32 {vr(vA)}, {sr(sT1)}")
        e(f"v_cvt_pk_bf16_f32 {vr(vA)}, {vr(vA)}, {vr(vA)}")
        e(f"v_lshlrev_b32 {vr(vA)}, 16, {vr(vA)}")
        e(f"v_mul_f32 {vr(vA)}, {fbits(-1.4426950408889634)}, {vr(vA)}")
        e(f"v_exp_f32 {vr(vA)}, {vr(vA)}")
        e("s_nop 0")
        e(f"v_add_f32 {vr(vA)}, 1.0, {vr(vA)}")
        e(f"v_rcp_f32 {vr(vA)}, {vr(vA)}")
        e("s_nop 0")
        e(f"v_cvt_pk_bf16_f32 {vr(vA)}, {vr(vA)}, {vr(vA)}")
        e(f"v_lshlrev_b32 {vr(vA)}, 16, {vr(vA)}")
        e(f"s_lshl_b32 {sr(sT1)}, {sr(sJ)}, 6")
        e(f"s_add_u32 {sr(sT0)}, {sr(sT0)}, {sr(sT1)}")
        e(f"s_lshl_b32 {sr(sT0)}, {sr(sT0)}, 2")
        e(f"s_add_u32 {sr(sT0)}, {sr(sT0)}, {GB}")
        e(f"v_mov_b32 {vr(vB)}, 0")
        e("s_mov_b64 exec, 1")
        e.vmem(f"buffer_store_dword {vr(vA)}, {vr(vB)}, {sr(S_WS,4)}, {sr(sT0)} offen sc1", "hst")
        e("s_mov_b64 exec, -1")

    def p1b_epilogue(self):
        e = self.e
        e("s_nop 7")
        e(f"s_lshl_b32 {sr(sT0)}, {sr(sJ)}, 1")
        e(f"s_add_u32 {sr(sT0)}, {sr(sT0)}, {sr(sB)}")
        e(f"s_mul_i32 {sr(sT0)}, {sr(sT0)}, 86")
        e(f"s_add_u32 {sr(sT0)}, {sr(sT0)}, {sr(sOFFA)}")
        e(f"s_mul_i32 {sr(sT1)}, {sr(sHD)}, 3")
        e(f"s_add_u32 {sr(sT0)}, {sr(sT0)}, {sr(sT1)}")
        e(f"s_lshl_b32 {sr(sT0)}, {sr(sT0)}, 10")
        e(f"s_add_u32 {sr(sT0)}, {sr(sT0)}, {HF}")
        e(f"s_mov_b32 {sr(sC2)}, {fbits(-1.4426950408889634)}")
        e(f"s_mov_b32 {sr(sC3)}, {fbits(-1.4426950408889634)}")
        e(f"s_mov_b32 {sr(sC0)}, 1.0")
        e(f"s_mov_b32 {sr(sC1)}, 1.0")
        for g in range(3):
            acc = ACC + 8*g
            t = XF
            for i in range(0, 8, 2):
                e(f"v_pk_mul_f32 {vr(t+i,2)}, {vr(acc+i,2)}, s[86:87]")
            for i in range(8):
                e(f"v_exp_f32 {vr(t+i)}, {vr(t+i)}")
            for i in range(0, 8, 2):
                e(f"v_pk_add_f32 {vr(t+i,2)}, {vr(t+i,2)}, s[84:85]")
            for i in range(8):
                e(f"v_rcp_f32 {vr(t+i)}, {vr(t+i)}")
            for i in range(0, 8, 2):
                e(f"v_pk_mul_f32 {vr(acc+i,2)}, {vr(acc+i,2)}, {vr(t+i,2)}")
            dst = WF + 4*g
            self.pack_frag(dst, acc, 16)
            e(f"s_add_u32 {sr(sT2)}, {sr(sT1)}, {g}")
            e(f"s_add_u32 {sr(sT3)}, {sr(sT0)}, {g*1024}")
            e(f"s_cmp_lt_u32 {sr(sT2)}, {sr(sOFFB)}")
            e(f"s_cselect_b32 {sr(sT3)}, {sr(sT3)}, {OOB}")
            e.vmem(f"buffer_store_dwordx4 {vr(dst,4)}, {vr(vL16)}, {sr(S_WS,4)}, {sr(sT3)} offen sc1", "hst")

    def publish_h(self):
        e = self.e
        e(f"s_lshl_b32 {sr(sT0)}, {sr(sJ)}, 6")
        e(f"s_lshl_b32 {sr(sT1)}, {sr(sK)}, 3")
        e(f"s_add_u32 {sr(sT0)}, {sr(sT0)}, {sr(sT1)}")
        e(f"s_add_u32 {sr(sT0)}, {sr(sT0)}, {sr(sW)}")
        e(f"s_lshl_b32 {sr(sT0)}, {sr(sT0)}, 2")
        e(f"s_add_u32 {sr(sT0)}, {sr(sT0)}, {FH}")
        self.flag_store(sT0)

    def p1(self):
        e = self.e
        for c in range(8):
            self.p1_iter(c)
        self.stamp("p1a")
        self.p1a_epilogue()
        for c in range(8, 16):
            if c == 12 and self.stop != "p1":
                self.att_setup()
            if c == 15 and self.stop != "p1":
                self.poll_issue("a", sOFFK, 32, vL4)
            self.p1_iter(c)
        self.stamp("p1b")

    def att_setup(self):
        e = self.e
        e(f"s_lshl_b32 {sr(sT0)}, {sr(sK)}, 2")
        e(f"s_add_u32 {sr(sT0)}, {sr(sT0)}, {sr(sHD)}")
        e(f"s_lshl_b32 {sr(sT1)}, {sr(sT0)}, 1")
        e(f"s_add_u32 {sr(sT1)}, {sr(sT1)}, {sr(sB)}")
        e(f"s_lshl_b32 {sr(sT2)}, {sr(sT1)}, 15")
        e(f"s_add_u32 {sr(sT2)}, {sr(sT2)}, {KF}")
        e(f"s_add_u32 {sr(S_K)}, {sr(sARG+18)}, {sr(sT2)}")
        e(f"s_addc_u32 {sr(S_K+1)}, {sr(sARG+19)}, 0")
        e(f"s_mov_b32 {sr(S_K+2)}, 0x8000")
        e(f"s_mov_b32 {sr(S_K+3)}, 0x20000")
        e(f"s_add_u32 {sr(S_V)}, {sr(S_K)}, {VF-KF}")
        e(f"s_addc_u32 {sr(S_V+1)}, {sr(S_K+1)}, 0")
        e(f"s_mov_b32 {sr(S_V+2)}, 0x8000")
        e(f"s_mov_b32 {sr(S_V+3)}, 0x20000")
        e(f"s_lshl_b32 {sr(sI)}, {sr(sJJ)}, {11 if self.o['map'] == 'half' else 10}")
        e(f"s_lshl_b32 {sr(sT1)}, {sr(sT1)}, 7")
        e(f"s_add_u32 {sr(sT1)}, {sr(sT1)}, {FA}")
        e(f"s_mov_b32 {sr(sOFFK)}, {sr(sT1)}")

    def att_soff(self, i):
        self.e(f"s_xor_b32 {sr(sT)}, {sr(sI)}, {i*1024}")
    def att_load_k(self, i, depth=4):
        self.e.vmem(f"buffer_load_dwordx4 {vr(K+4*(i%depth),4)}, {vr(vL16)}, {sr(S_K,4)}, {sr(sT)} offen sc1", ("kv", i))
    def att_load_v(self, i, depth=4):
        e = self.e; sl = i % depth
        e(f"s_mov_b64 exec, {sr(sMASK,2)}")
        e.vmem(f"buffer_load_dwordx4 {vr(V+8*sl,4)}, {vr(vKV)}, {sr(S_V,4)}, {sr(sT)} offen sc1", ("kv", i))
        e.vmem(f"buffer_load_dwordx4 {vr(V+8*sl+4,4)}, {vr(vKV)}, {sr(S_V,4)}, {sr(sT)} offen offset:512 sc1", ("kv", i))
        e("s_mov_b64 exec, -1")

    def att_prefetch(self, depth=4):
        for i in range(depth - 1):
            self.att_soff(i); self.att_load_k(i); self.att_load_v(i)
        self.att_soff(depth - 1)

    def dma_round(self, r):
        e = self.e
        e(f"s_add_u32 m0, {sr(sC2)}, {(r % 20)*RSLOT}")
        if r < 22:
            e(f"s_mov_b32 {sr(sC3)}, {r*65536}")
            e.vmem(f"buffer_load_dwordx4 {vr(vD2)}, {sr(S_W2,4)}, {sr(sC3)} offen lds", ("r", r))
        else:
            e(f"s_mov_b32 {sr(sC3)}, {(r-22)*65536}")
            e.vmem(f"buffer_load_dwordx4 {vr(vD2)}, {sr(S_WO,4)}, {sr(sC3)} offen lds", ("r", r))

    def load_h(self, r):
        e = self.e
        e(f"s_add_u32 {sr(sC3)}, {sr(sC1)}, {r*4096}")
        e.vmem(f"buffer_load_dwordx4 {vr(H+4*r,4)}, {vr(vL16)}, {sr(S_WS,4)}, {sr(sC3)} offen sc1", ("h", r))

    def attention(self, ntiles=32, depth=4):
        e = self.e
        def qk(u):
            t, b = divmod(u, 2)
            return f"v_mfma_f32_32x32x16_bf16 {vr(S+16*(u%2),16)}, {vr(K+4*(t%depth),4)}, {vr(Q+4*b,4)}, 0"
        def pv(u, m, first=False):
            t, b = divmod(u, 2)
            c = "0" if first else vr(O+16*b, 16)
            return f"v_mfma_f32_32x32x16_bf16 {vr(O+16*b,16)}, {vr(V+8*(t%depth)+4*m,4)}, {vr(P+4*m,4)}, {c}"
        def ex(u, i):
            r = S + 16*(u % 2) + i
            return f"v_exp_f32 {vr(r)}, {vr(r)}"
        def cv(u, i):
            r = S + 16*(u % 2) + 2*i
            return f"v_cvt_pk_bf16_f32 {vr(P+i)}, {vr(r)}, {vr(r+1)}"
        nu = 2 * ntiles
        e.wait_vm(("kv", 0))
        e(qk(0))
        e("s_nop 15")
        e("s_nop 3")
        for u in range(nu):
            t, b = divmod(u, 2)
            pre = t + depth - 1 < ntiles
            e(ex(u, 0)); e(ex(u, 1))
            if u > 0:
                e(pv(u - 1, 1))
            if b == 0 and pre:
                self.att_load_v(t + depth - 1)
            if b == 1 and t + 1 < ntiles:
                e.wait_vm(("kv", t + 1))
            for i in range(2, 6):
                e(ex(u, i))
            if u + 1 < nu:
                e(qk(u + 1))
            if b == 1 and t + depth < ntiles:
                self.att_soff(t + depth)
            if b == 0:
                self.att_hook(t, 0)
            e(ex(u, 6)); e(ex(u, 7))
            for i in range(4):
                e(cv(u, i))
            e(ex(u, 8)); e(ex(u, 9))
            e(pv(u, 0, first=(t == 0)))
            if b == 0 and pre:
                self.att_load_k(t + depth - 1)
            if b == 1:
                self.att_hook(t, 1)
            for i in range(10, 16):
                e(ex(u, i))
            for i in range(4, 8):
                e(cv(u, i))
        e("s_nop 1")
        e(pv(nu - 1, 1))

    def att_hook(self, t, pos):
        e = self.e
        if t == 0 and pos == 0:
            e(f"s_lshl_b32 {sr(sT0)}, s2, 3")
            e(f"s_add_u32 {sr(sT0)}, {sr(sT0)}, {sr(sW)}")
            e(f"s_mul_i32 {sr(sT1)}, {sr(sT0)}, 11")
            e(f"s_min_u32 {sr(sT1)}, {sr(sT1)}, {22016-11}")
            e(f"s_lshl_b32 {sr(sT1)}, {sr(sT1)}, 6")
            e(f"s_add_u32 s90, {sr(sARG+10)}, {sr(sT1)}")
            e(f"s_addc_u32 s91, {sr(sARG+11)}, 0")
            e(f"s_lshl_b32 {sr(sT1)}, {sr(sT0)}, 8")
            e(f"s_add_u32 s92, {sr(sARG+4)}, {sr(sT1)}")
            e(f"s_addc_u32 s93, {sr(sARG+5)}, 0")
        if t <= 3:
            n0 = (2*t + pos) * 2
            for i in range(n0, min(n0 + 2, 15)):
                if i < 11:
                    e(f"s_load_dword s99, s[90:91], {64*i}")
                else:
                    e(f"s_load_dword s99, s[92:93], {64*(i-11)}")
        if t == 3 and pos == 0:
            e.wait_vm("hst")
            self.publish_h()
        if t == 4 and pos == 0:
            e(f"s_lshl_b32 {sr(sC2)}, {sr(sW)}, 10")
        if pos == 1 and 10 <= t <= 26:
            self.dma_round(t - 10)
        if t == 6 and pos == 0:
            e(f"s_lshl_b32 {sr(sC1)}, {sr(sJP)}, 8")
            e(f"s_add_u32 {sr(sC1)}, {sr(sC1)}, {FH}")
            self.poll_issue("h", sC1, 64, vL4)
        if t == 8 and pos == 0:
            self.poll_check("h", sC1, 64, vL4)
            e(f"s_lshl_b32 {sr(sC1)}, {sr(sJP)}, 1")
            e(f"s_add_u32 {sr(sC1)}, {sr(sC1)}, {sr(sB)}")
            e(f"s_mul_i32 {sr(sC1)}, {sr(sC1)}, 86")
            e(f"s_add_u32 {sr(sC1)}, {sr(sC1)}, {sr(sHD)}")
            e(f"s_lshl_b32 {sr(sC1)}, {sr(sC1)}, 10")
            e(f"s_add_u32 {sr(sC1)}, {sr(sC1)}, {HF}")
        if pos == 0 and 9 <= t <= 30:
            self.load_h(t - 9)
        if t == 31 and pos == 0:
            e(f"s_lshl_b32 {sr(sT0)}, {sr(sJP)}, 6")
            e(f"s_lshl_b32 {sr(sT1)}, {sr(sB)}, 5")
            e(f"s_add_u32 {sr(sT0)}, {sr(sT0)}, {sr(sT1)}")
            e(f"s_lshl_b32 {sr(sT0)}, {sr(sT0)}, 2")
            e(f"s_add_u32 {sr(sT0)}, {sr(sT0)}, {GB}")
            e(f"v_and_b32 {vr(vC)}, 31, {vr(vLANE)}")
            e(f"v_lshlrev_b32 {vr(vC)}, 2, {vr(vC)}")
            e.vmem(f"buffer_load_dword {vr(vG)}, {vr(vC)}, {sr(S_WS,4)}, {sr(sT0)} offen sc1", "g")

    def att_epilogue(self):
        e = self.e
        e("s_nop 15")
        e(f"s_lshl_b32 {sr(sT0)}, {sr(sW)}, 11")
        e(f"s_lshl_b32 {sr(sT1)}, {sr(sW)}, 8")
        e(f"s_add_u32 {sr(sT0)}, {sr(sT0)}, {sr(sT1)}")
        e(f"s_add_u32 {sr(sT0)}, {sr(sT0)}, {EXCH}")
        e(f"v_lshlrev_b32 {vr(vC)}, 2, {vr(vLANE)}")
        e(f"v_add_u32 {vr(vE0)}, {sr(sT0)}, {vr(vC)}")
        e(f"s_xor_b32 {sr(sT1)}, {sr(sW)}, 1")
        e(f"s_mul_i32 {sr(sT1)}, {sr(sT1)}, 2304")
        e(f"s_add_u32 {sr(sT1)}, {sr(sT1)}, {EXCH}")
        e(f"v_add_u32 {vr(vE1)}, {sr(sT1)}, {vr(vC)}")
        e(f"s_cmp_eq_u32 {sr(sB)}, 0")
        e("s_cbranch_scc1 L_b0")
        for i in range(9):
            e(f"ds_write_b32 {vr(vE0)}, {vr(O+i)} offset:{256*i}")
        for i in range(9):
            e(f"v_mov_b32 {vr(O+i)}, {vr(O+16+i)}")
        e(f"v_mov_b32 {vr(Q)}, {vr(Q+4)}")
        e(f"v_mov_b32 {vr(Q+1)}, {vr(Q+5)}")
        e(f"v_mov_b32 {vr(Q+2)}, {vr(Q+6)}")
        e(f"v_mov_b32 {vr(Q+3)}, {vr(Q+7)}")
        e("s_branch L_bx")
        e.label("L_b0")
        for i in range(9):
            e(f"ds_write_b32 {vr(vE0)}, {vr(O+16+i)} offset:{256*i}")
        e.label("L_bx")
        e.wait_vm([("r", r) for r in range(17)] + [("h", r) for r in range(22)] + ["g"])
        e("s_waitcnt lgkmcnt(0)")
        e("s_barrier")
        for i in range(9):
            e.ds(f"ds_read_b32 {vr(S+i)}, {vr(vE1)} offset:{256*i}", "ox")
        e.wait_lg("ox")
        for i in range(9):
            e(f"v_add_f32 {vr(O+i)}, {vr(O+i)}, {vr(S+i)}")
        e(f"v_mov_b32 {vr(vA)}, {fbits(2.0**-64)}")
        e(f"v_mov_b32 {vr(vB)}, {fbits(2.0**64)}")
        e(f"v_cmp_nle_f32 vcc, {vr(vA)}, {vr(O+8)}")
        e(f"v_cmp_nle_f32 s[48:49], {vr(O+8)}, {vr(vB)}")
        e(f"s_or_b64 vcc, vcc, s[48:49]")
        e(f"s_movk_i32 {sr(sT2)}, 0x207")
        for i in range(8):
            e(f"v_cmp_class_f32 s[48:49], {vr(O+i)}, {sr(sT2)}")
            e(f"s_or_b64 vcc, vcc, s[48:49]")
        e("s_cbranch_vccz L_fast")
        self.slow_path()
        e.label("L_fast")
        e(f"v_rcp_f32 {vr(vA)}, {vr(O+8)}")
        e("s_nop 0")
        for i in range(8):
            e(f"v_mul_f32 {vr(O+i)}, {vr(O+i)}, {vr(vA)}")
        for i in range(4):
            e(f"v_cvt_pk_bf16_f32 {vr(P+i)}, {vr(O+2*i)}, {vr(O+2*i+1)}")
        e(f"s_lshl_b32 {sr(sT0)}, {sr(sJ)}, 1")
        e(f"s_add_u32 {sr(sT0)}, {sr(sT0)}, {sr(sB)}")
        e(f"s_lshl_b32 {sr(sT0)}, {sr(sT0)}, 5")
        e(f"s_lshl_b32 {sr(sT1)}, {sr(sK)}, 2")
        e(f"s_add_u32 {sr(sT0)}, {sr(sT0)}, {sr(sT1)}")
        e(f"s_add_u32 {sr(sT0)}, {sr(sT0)}, {sr(sHD)}")
        e(f"s_lshl_b32 {sr(sT0)}, {sr(sT0)}, 10")
        e(f"s_add_u32 {sr(sT0)}, {sr(sT0)}, {OF}")
        e.vmem(f"buffer_store_dwordx4 {vr(P,4)}, {vr(vL16)}, {sr(S_WS,4)}, {sr(sT0)} offen sc1", "ost")

    def slow_path(self):
        e = self.e
        e("s_waitcnt vmcnt(0)")
        saved = list(e.vm); e.vm = []
        e(f"s_lshl_b32 {sr(sT0)}, {sr(sK)}, 2")
        e(f"s_add_u32 {sr(sT0)}, {sr(sT0)}, {sr(sHD)}")
        e(f"s_lshl_b32 {sr(sT0)}, {sr(sT0)}, 16")
        e(f"s_add_u32 {sr(sT0)}, {sr(sT0)}, {KF}")
        e(f"v_mov_b32 {vr(vA)}, 0xff800000")
        e(f"s_mov_b32 {sr(sT1)}, 0")
        e.label("L_max")
        e(f"s_add_u32 {sr(sT2)}, {sr(sT0)}, {sr(sT1)}")
        e(f"buffer_load_dwordx4 {vr(K,4)}, {vr(vL16)}, {sr(S_WS,4)}, {sr(sT2)} offen sc1")
        e("s_waitcnt vmcnt(0)")
        e(f"v_mfma_f32_32x32x16_bf16 {vr(S,16)}, {vr(K,4)}, {vr(Q,4)}, 0")
        e("s_nop 15")
        e("s_nop 3")
        for i in range(8):
            e(f"v_max3_f32 {vr(vA)}, {vr(vA)}, {vr(S+2*i)}, {vr(S+2*i+1)}")
        e(f"s_add_u32 {sr(sT1)}, {sr(sT1)}, 0x400")
        e(f"s_cmp_lt_u32 {sr(sT1)}, 0x10000")
        e("s_cbranch_scc1 L_max")
        e(f"v_mov_b32 {vr(vB)}, {vr(vA)}")
        e("s_nop 1")
        e(f"v_permlane32_swap_b32 {vr(vA)}, {vr(vB)}")
        e("s_nop 1")
        e(f"v_max_f32 {vr(vA)}, {vr(vA)}, {vr(vB)}")
        for i in range(16):
            e(f"v_sub_f32 {vr(S+16+i)}, 0, {vr(vA)}")
        for i in range(16):
            e(f"v_mov_b32 {vr(O+i)}, 0")
        e(f"s_mov_b32 {sr(sT1)}, 0")
        e.label("L_sum")
        e(f"s_add_u32 {sr(sT2)}, {sr(sT0)}, {sr(sT1)}")
        e(f"s_add_u32 {sr(sT3)}, {sr(sT2)}, {VF-KF}")
        e(f"buffer_load_dwordx4 {vr(K,4)}, {vr(vL16)}, {sr(S_WS,4)}, {sr(sT2)} offen sc1")
        e(f"s_mov_b64 exec, {sr(sMASK,2)}")
        e(f"buffer_load_dwordx4 {vr(V,4)}, {vr(vKV)}, {sr(S_WS,4)}, {sr(sT3)} offen sc1")
        e(f"buffer_load_dwordx4 {vr(V+4,4)}, {vr(vKV)}, {sr(S_WS,4)}, {sr(sT3)} offen offset:512 sc1")
        e("s_mov_b64 exec, -1")
        e("s_waitcnt vmcnt(0)")
        e(f"v_mfma_f32_32x32x16_bf16 {vr(S,16)}, {vr(K,4)}, {vr(Q,4)}, {vr(S+16,16)}")
        e("s_nop 15")
        e("s_nop 3")
        for i in range(16):
            e(f"v_exp_f32 {vr(S+i)}, {vr(S+i)}")
        e("s_nop 0")
        for i in range(8):
            e(f"v_cvt_pk_bf16_f32 {vr(P+i)}, {vr(S+2*i)}, {vr(S+2*i+1)}")
        e("s_nop 1")
        e(f"v_mfma_f32_32x32x16_bf16 {vr(O,16)}, {vr(V,4)}, {vr(P,4)}, {vr(O,16)}")
        e(f"v_mfma_f32_32x32x16_bf16 {vr(O,16)}, {vr(V+4,4)}, {vr(P+4,4)}, {vr(O,16)}")
        e(f"s_add_u32 {sr(sT1)}, {sr(sT1)}, 0x400")
        e(f"s_cmp_lt_u32 {sr(sT1)}, 0x10000")
        e("s_cbranch_scc1 L_sum")
        e("s_nop 15")
        e("s_nop 3")
        e.vm = saved

    def p3(self):
        e = self.e
        AB, AA = 16, 48
        AF = 80
        OFR = H
        self.p3_bases()
        def rd(r):
            buf = AF + 8*(r % 2); sl = r % 20
            ffn = r < 22
            hi = sl // 8
            bases = self.p3base[(ffn, hi)]
            du = 512 if ffn else 1024
            for nt in range(2):
                for u in range(2):
                    e.ds(f"ds_read_b64_tr_b16 {vr(buf+4*nt+2*u,2)}, {vr(bases[nt])} offset:{(sl % 8)*RSLOT + u*du}", ("a", r))
        def mm(r):
            buf = AF + 8*(r % 2)
            ffn = r < 22
            acc = AB if ffn else AA
            bop = vr(H+4*r, 4) if ffn else vr(OFR+4*(r-22), 4)
            first = r == 0 or r == 22
            for nt in range(2):
                c = "0" if first else vr(acc+16*nt, 16)
                e(f"v_mfma_f32_32x32x16_bf16 {vr(acc+16*nt,16)}, {vr(buf+4*nt,4)}, {bop}, {c}")
        def barrier():
            e("s_barrier")
        rd(0)
        for r in range(30):
            if r == 4:
                e.wait_lg_all(); barrier()
                for q in (17, 18, 19, 20, 21, 22, 23):
                    self.dma_round(q)
                rd(r)
            if r == 10:
                e.wait_lg_all(); barrier()
                for q in range(24, 30):
                    self.dma_round(q)
                rd(r)
            if r == 8:
                e.wait_vm("ost")
                e(f"s_lshl_b32 {sr(sT0)}, {sr(sJ)}, 6")
                e(f"s_lshl_b32 {sr(sT1)}, {sr(sW)}, 3")
                e(f"s_add_u32 {sr(sT0)}, {sr(sT0)}, {sr(sT1)}")
                e(f"s_add_u32 {sr(sT0)}, {sr(sT0)}, {sr(sK)}")
                e(f"s_lshl_b32 {sr(sT0)}, {sr(sT0)}, 2")
                e(f"s_add_u32 {sr(sT0)}, {sr(sT0)}, {FO}")
                self.flag_store(sT0)
            if r == 15:
                e.wait_lg_all()
                e(f"s_lshl_b32 {sr(sT0)}, {sr(sJP)}, 6")
                e(f"s_lshl_b32 {sr(sT1)}, {sr(sW)}, 3")
                e(f"s_add_u32 {sr(sT0)}, {sr(sT0)}, {sr(sT1)}")
                e(f"s_lshl_b32 {sr(sT0)}, {sr(sT0)}, 2")
                e(f"s_add_u32 {sr(sT0)}, {sr(sT0)}, {FO}")
                self.stamp("pre-poll-o")
                self.poll_issue("o", sT0, 8, vL4)
                self.poll_check("o", sT0, 8, vL4)
                self.stamp("poll-o")
                e(f"s_lshl_b32 {sr(sT0)}, {sr(sJP)}, 1")
                e(f"s_add_u32 {sr(sT0)}, {sr(sT0)}, {sr(sB)}")
                e(f"s_lshl_b32 {sr(sT0)}, {sr(sT0)}, 5")
                e(f"s_add_u32 {sr(sT0)}, {sr(sT0)}, {sr(sHD)}")
                e(f"s_lshl_b32 {sr(sT0)}, {sr(sT0)}, 10")
                e(f"s_add_u32 {sr(sT0)}, {sr(sT0)}, {OF}")
                for q in range(8):
                    e(f"s_add_u32 {sr(sT1)}, {sr(sT0)}, {q*4096}")
                    e.vmem(f"buffer_load_dwordx4 {vr(OFR+4*q,4)}, {vr(vL16)}, {sr(S_WS,4)}, {sr(sT1)} offen sc1", ("o", q))
                rd(r)
            if r == 17:
                e.wait_lg_all()
                e.wait_vm([("r", q) for q in range(17, 22)])
                barrier()
                rd(r)
            if r == 22:
                e.wait_lg_all()
                e.wait_vm([("r", q) for q in range(22, 30)])
                barrier()
                rd(r)
            nxt = r + 1
            if nxt < 30 and nxt not in (4, 10, 15, 17, 22):
                rd(nxt)
            e.wait_lg(("a", r))
            if r == 21:
                e(f"s_cmp_ge_u32 {sr(sHD)}, 2")
                e("s_cbranch_scc1 L_skip21")
                mm(r)
                e.label("L_skip21")
            else:
                if r >= 22:
                    e.wait_vm(("o", r - 22))
                mm(r)
        self.stamp("rounds")
        e("s_nop 15")
        e(f"v_sub_f32 {vr(vA)}, 1.0, {vr(vG)}")
        e(f"v_cvt_pk_bf16_f32 {vr(vA)}, {vr(vA)}, {vr(vA)}")
        e(f"v_lshlrev_b32 {vr(vA)}, 16, {vr(vA)}")
        for i in range(32):
            e(f"v_mul_f32 {vr(AB+i)}, {vr(AB+i)}, {vr(vA)}")
            e(f"v_fmac_f32 {vr(AB+i)}, {vr(AA+i)}, {vr(vG)}")
        e("s_barrier")
        e(f"s_lshl_b32 {sr(sT0)}, {sr(sW)}, 13")
        e(f"v_add_u32 {vr(vB)}, {sr(sT0)}, {vr(vL16)}")
        for q in range(8):
            e(f"ds_write_b128 {vr(vB)}, {vr(AB+4*q,4)} offset:{q*1024}")
        e("s_waitcnt lgkmcnt(0)")
        e("s_barrier")
        e(f"s_lshl_b32 {sr(sT0)}, {sr(sB)}, 13")
        e(f"s_lshl_b32 {sr(sT1)}, {sr(sHD)}, 11")
        e(f"s_add_u32 {sr(sT0)}, {sr(sT0)}, {sr(sT1)}")
        e(f"v_add_u32 {vr(vB)}, {sr(sT0)}, {vr(vL16)}")
        for kq in range(4):
            for h in range(2):
                e.ds(f"ds_read_b128 {vr(AA+8*kq+4*h,4)}, {vr(vB)} offset:{kq*16384 + h*1024}", "red")
        e.wait_lg("red")
        for i in range(8):
            e(f"v_add_f32 {vr(AA+i)}, {vr(AA+i)}, {vr(AA+8+i)}")
            e(f"v_add_f32 {vr(AA+16+i)}, {vr(AA+16+i)}, {vr(AA+24+i)}")
        for i in range(8):
            e(f"v_add_f32 {vr(AA+i)}, {vr(AA+i)}, {vr(AA+16+i)}")
        for i in range(4):
            e(f"v_cvt_pk_bf16_f32 {vr(AB+i)}, {vr(AA+2*i)}, {vr(AA+2*i+1)}")
        e("s_nop 1")
        e(f"v_permlane32_swap_b32 {vr(AB)}, {vr(AB+2)}")
        e(f"v_permlane32_swap_b32 {vr(AB+1)}, {vr(AB+3)}")
        e(f"v_and_b32 {vr(vB)}, 31, {vr(vLANE)}")
        e(f"v_lshlrev_b32 {vr(vB)}, 10, {vr(vB)}")
        e(f"v_lshrrev_b32 {vr(vC)}, 5, {vr(vLANE)}")
        e(f"v_lshl_add_u32 {vr(vB)}, {vr(vC)}, 4, {vr(vB)}")
        e(f"s_lshl_b32 {sr(sT0)}, {sr(sJP)}, 16")
        e(f"s_lshl_b32 {sr(sT1)}, {sr(sB)}, 15")
        e(f"s_add_u32 {sr(sT0)}, {sr(sT0)}, {sr(sT1)}")
        e(f"s_lshl_b32 {sr(sT1)}, {sr(sNB)}, 7")
        e(f"s_add_u32 {sr(sT0)}, {sr(sT0)}, {sr(sT1)}")
        e(f"s_lshl_b32 {sr(sT1)}, {sr(sHD)}, 5")
        e(f"s_add_u32 {sr(sT0)}, {sr(sT0)}, {sr(sT1)}")
        e.vmem(f"buffer_store_dwordx4 {vr(AB,4)}, {vr(vB)}, {sr(S_OUT,4)}, {sr(sT0)} offen", "out")

    def p3_bases(self):
        e = self.e
        self.p3base = {(True, 0): (vF0, vF1), (False, 0): (vO0, vO1)}
        r = 96
        for ffn, (a0, a1) in ((True, (vF0, vF1)), (False, (vO0, vO1))):
            for hi in (1, 2):
                e(f"v_add_u32 {vr(r)}, {hi*8*RSLOT}, {vr(a0)}")
                e(f"v_add_u32 {vr(r+1)}, {hi*8*RSLOT}, {vr(a1)}")
                self.p3base[(ffn, hi)] = (r, r + 1)
                r += 2

    def finish(self):
        e = self.e
        e("s_cmp_lg_u32 s2, 0")
        e("s_cbranch_scc1 L_noepoch")
        e(f"s_cmp_lg_u32 {sr(sW)}, 0")
        e("s_cbranch_scc1 L_noepoch")
        e(f"s_mov_b32 {sr(sT0)}, {EPOCH}")
        self.flag_store(sT0)
        e.label("L_noepoch")
        if self.prof:
            e.wait_vm_all()
            self.stamp("end")
            self.rt_stamp(63)
            e(f"s_lshl_b32 {sr(sT0)}, s2, 3")
            e(f"s_add_u32 {sr(sT0)}, {sr(sT0)}, {sr(sW)}")
            e(f"s_lshl_b32 {sr(sT0)}, {sr(sT0)}, 8")
            e(f"s_add_u32 {sr(sT0)}, {sr(sT0)}, {PROF}")
            e(f"buffer_store_dword {vr(vST)}, {vr(vL4)}, {sr(S_WS,4)}, {sr(sT0)} offen")

    def build(self):
        e = self.e
        self.stamp_first = None
        self.prologue()
        self.stamp("prologue")
        self.p1()
        e.wait_lg_all()
        e("s_barrier")
        e(f"s_lshl_b32 {sr(sT0)}, {sr(sW)}, 10")
        e(f"s_add_u32 {sr(sT0)}, {sr(sT0)}, {QEX}")
        e(f"v_add_u32 {vr(vC)}, {sr(sT0)}, {vr(vL16)}")
        e(f"ds_write_b128 {vr(vC)}, {vr(QF,4)}")
        if self.stop != "p1":
            self.poll_check("a", sOFFK, 32, vL4)
            self.att_prefetch()
        self.p1b_epilogue()
        e("s_waitcnt lgkmcnt(0)")
        e("s_barrier")
        if self.stop == "p1":
            e.wait_vm_all()
            self.publish_h()
            e(f"s_lshl_b32 {sr(sT0)}, s2, 3")
            e(f"s_add_u32 {sr(sT0)}, {sr(sT0)}, {sr(sW)}")
            e(f"s_lshl_b32 {sr(sT0)}, {sr(sT0)}, 10")
            e(f"s_add_u32 {sr(sT0)}, {sr(sT0)}, {OF}")
            e.vmem(f"buffer_store_dwordx4 {vr(QF,4)}, {vr(vL16)}, {sr(S_WS,4)}, {sr(sT0)} offen", "q")
        else:
            e(f"s_lshl_b32 {sr(sT0)}, {sr(sHD)}, 11")
            e(f"s_add_u32 {sr(sT0)}, {sr(sT0)}, {QEX}")
            e(f"v_add_u32 {vr(vC)}, {sr(sT0)}, {vr(vL16)}")
            e.ds(f"ds_read_b128 {vr(Q,4)}, {vr(vC)}", "q")
            e.ds(f"ds_read_b128 {vr(Q+4,4)}, {vr(vC)} offset:1024", "q")
            e.wait_lg("q")
            self.stamp("pre-att")
            self.attention()
            self.stamp("att")
            self.att_epilogue()
            self.stamp("att-epi")
            if self.stop == "att":
                e.wait_vm_all()
            else:
                self.p3()
        self.finish()
        e.label("L_end")
        e("s_endpgm")
        e.label("L_code_end")
        head = [f"; Fused gated MHA block + SiLU feed-forward, one launch; generated by work/gen.py",
                f"; @launch grid=(256,1,1) block=(512,1,1) lds={LDS_BYTES}",
                '.amdgcn_target "amdgcn-amd-amdhsa--gfx950"', ".text", f".globl {KNAME}", ".p2align 8",
                f".type {KNAME},@function", f"{KNAME}:"]
        tail = f"""
.section .rodata,"a"
.p2align 6
.amdhsa_kernel {KNAME}
  .amdhsa_next_free_vgpr {NVGPR}
  .amdhsa_next_free_sgpr 102
  .amdhsa_accum_offset {NVGPR}
  .amdhsa_group_segment_fixed_size 0
  .amdhsa_kernarg_size 80
  .amdhsa_user_sgpr_count 2
  .amdhsa_user_sgpr_kernarg_segment_ptr 1
  .amdhsa_system_sgpr_workgroup_id_x 1
  .amdhsa_float_denorm_mode_32 3
.end_amdhsa_kernel
"""
        return "\n".join(head) + "\n" + e.text() + tail


if __name__ == "__main__":
    import argparse
    ap = argparse.ArgumentParser()
    ap.add_argument("-o", default="cdna_kernels/" + NAME + ".s")
    ap.add_argument("--stop")
    ap.add_argument("--prof", action="store_true")
    ap.add_argument("--opt", action="append", default=[])
    a = ap.parse_args()
    opts = dict(x.split("=") for x in a.opt)
    g = Gen(a.stop, a.prof, opts)
    open(a.o, "w").write(g.build())
    if a.prof:
        open(a.o + ".stamps", "w").write("\n".join(g.stamps))
```
